```python
import torch

def _softmax(x, axis=-1):
    return torch.softmax(x, dim=axis)
def _gelu(x):
    return torch.nn.functional.gelu(x, approximate="tanh")
def _silu(x):
    return torch.nn.functional.silu(x)
def _sigmoid(x):
    return torch.sigmoid(x)
def _layernorm(x, axis=-1, eps=1e-5):
    m = x.mean(dim=axis, keepdim=True)
    v = x.var(dim=axis, keepdim=True, unbiased=False)
    return (x - m) / torch.sqrt(v + eps)
def _scatter_add(tgt, idx, src, axis=0):
    return tgt.clone().index_add_(axis, idx, src)
def _segment_sum(src, seg, n):
    out = torch.zeros((n,) + src.shape[1:], dtype=src.dtype)
    return out.index_add_(0, seg, src)
def _pad(x, pw):
    flat = tuple(v for pair in reversed(pw) for v in pair)
    return torch.nn.functional.pad(x, flat)

kernel_name = 'sequential_preLN__mha_block_cached__mixer_channel_mlp__decode'

def setup_inputs():

    _w = (lambda a: (lambda t: t.to(torch.bfloat16) if t.is_floating_point() else t)(torch.as_tensor(a)))
    def _A_setup():
        B, Sq, D = 2, 1, 512
        H, Sk, Dh = 32, 8192, 128
        return {
            "x": _w((lambda *s: torch.randn(*s, dtype=torch.bfloat16) * 0.05)(B, Sq, D)),
            "k_cache": _w((lambda *s: torch.randn(*s, dtype=torch.bfloat16) * 3.2)(B, H, Sk, Dh)),
            "v_cache": _w((lambda *s: torch.randn(*s, dtype=torch.bfloat16) * 0.4)(B, H, Sk, Dh)),
            "wq": _w((lambda *s: torch.randn(*s, dtype=torch.bfloat16) * 3.2)(D, H * Dh) * (D ** -0.5)),
            "wo": _w((lambda *s: torch.randn(*s, dtype=torch.bfloat16) * 0.4)(H * Dh, D) * ((H * Dh) ** -0.5)),
        }
    _A_in = _A_setup()

    def _B_setup():
        B, S, D, F = 2, 1, 512, 1792
        return {
            "x": _w((lambda *s: torch.randn(*s, dtype=torch.bfloat16) * 0.05)(B, S, D)),
            "w1": _w((lambda *s: torch.randn(*s, dtype=torch.bfloat16) * 3.2)(D, F) * (D ** -0.5)),
            "b1": _w((lambda *s: torch.randn(*s, dtype=torch.bfloat16) * 3.2)(F)),
            "w2": _w((lambda *s: torch.randn(*s, dtype=torch.bfloat16) * 0.8)(F, D) * (F ** -0.5)),
            "b2": _w((lambda *s: torch.randn(*s, dtype=torch.bfloat16) * 1.6)(D)),
        }
    _B_in = _B_setup()

    return {
        "A_x": _A_in["x"],
        "A_k_cache": _A_in["k_cache"],
        "A_v_cache": _A_in["v_cache"],
        "A_wq": _A_in["wq"],
        "A_wo": _A_in["wo"],
        "B_x": _B_in["x"],
        "B_w1": _B_in["w1"],
        "B_b1": _B_in["b1"],
        "B_w2": _B_in["w2"],
        "B_b2": _B_in["b2"],
    }

def reference(A_x, A_k_cache, A_v_cache, A_wq, A_wo, B_x, B_w1, B_b1, B_w2, B_b2):
    def _A_ref(x, k_cache, v_cache, wq, wo):
        B, Sq, D = x.shape
        H, Dh = 32, 128
        q = (lambda x, *d: x.permute(*d))((x @ wq).reshape(B, Sq, H, Dh), 0, 2, 1, 3)
        scores = torch.einsum("bhqd,bhkd->bhqk", q, k_cache) * (Dh ** -0.5)
        p = _softmax(scores, axis=-1)
        o = torch.einsum("bhqk,bhkd->bhqd", p, v_cache)
        return (lambda x, *d: x.permute(*d))(o, 0, 2, 1, 3).reshape(B, Sq, H * Dh) @ wo

    def _B_ref(x, w1, b1, w2, b2):
        y = _layernorm(x, axis=-1)
        h = _gelu(torch.einsum("bsd,df->bsf", y, w1) + b1)
        return torch.einsum("bsf,fd->bsd", h, w2) + b2

    x = A_x
    h = x + _A_ref(_layernorm(x, axis=-1), A_k_cache, A_v_cache, A_wq, A_wo)
    h2 = h + _B_ref(_layernorm(h, axis=-1), B_w1, B_b1, B_w2, B_b2)
    return h2
```

```python
import sys
KNAME = "sequential_preLN__mha_block_cached__mixer_channel_mlp__decode_kernel"

HEADER = """; Kernarg layout for this problem (104 bytes, ptrs only, base s[0:1]):
;   offset  32: d_in[4] A_wo  shape=(4096, 512) dtype=bfloat16 strides=(1024, 2) contiguous=True
;   offset  96: d_ws      536870912 bytes workspace
"""

WS_P = 0
WS_ML = 0x80000
WS_H = 0x81000
WS_G = 0x82000
WS_TS = 0x100000
WS_DBG = 0x200000
WS_SIZE = 0x1000000

L_RW = 0
L_Y = 65536
L_Q = L_Y + 8192
L_O = L_Q + 2048
L_ML = L_O + 2048
L_R = L_ML + 64
LDS_TOTAL = L_R + 1024

S_W = 3; S_XCD = 4; S_SLOT = 5; S_B = 6; S_H = 7; S_SPLIT = 8; S_P = 9
P_X, P_K, P_V, P_WQ, P_WO, P_BX, P_W1, P_B1, P_W2, P_B2, P_OUT, P_DBG, P_WS = 16, 18, 20, 22, 24, 26, 28, 30, 32, 34, 36, 38, 40
R_K = 44; R_V = 48; R_WQ = 52; R_WO = 56; R_WS = 60; R_RW = 64; R_X = 68; R_DBG = 72; R_OUT = 76
S_KO = 80; S_VO = 81; S_WOFF = 82; S_CNT = 83; S_ROLE = 84; S_RIDX = 85
S_M1 = 86; S_M2 = 88; S_EX = 90; S_T = 92
S_TMP = 10
R_BIAS = 96

V_TID = 0; V_L16 = 1; V_LANE = 2; V_T0 = 3
V_Q = 4
V_MASK = 8
V_D = 12
V_A0 = 16; V_A1 = 20
V_S = 24
V_M = 40; V_L = 41
V_T = 42
V_X = 60
V_KB = 64
V_Z = 128
V_TS = 200
A_VB = 0
A_W = 64

LOG2E = 0x3fb8aa3b
SCALE = 0x3db504f3


class Gen:
    def __init__(self, prof=False, dbg=None, opts=None):
        self.L = []
        self.q = []
        self.prof = prof
        self.dbg = dbg or set()
        self.o = opts or {}
        self.nts = 0
        self.uid = 0

    def A(self, s):
        self.L.append("  " + s)

    def lab(self, s):
        self.L.append(s + ":")

    def sexec(self, m):
        if m == -1:
            self.A("s_mov_b64 exec, -1"); return
        lo, hi = m & 0xffffffff, m >> 32
        self.A(f"s_mov_b32 exec_lo, 0x{lo:x}"); self.A(f"s_mov_b32 exec_hi, 0x{hi:x}")

    def nop(self, n):
        while n > 0:
            k = min(n, 16); self.A(f"s_nop {k-1}"); n -= k

    def vm(self, text, tag=None, optional=False):
        self.A(text)
        self.q.append((tag, optional))
        assert len(self.q) <= 63, f"too many outstanding vmem ops: {len(self.q)} at {text}"

    def wait(self, tag):
        idx = [i for i, (t, o) in enumerate(self.q) if t == tag]
        assert idx, f"tag {tag} not outstanding"
        i = idx[-1]
        n = sum(1 for (t, o) in self.q[i + 1:] if not o)
        self.A(f"s_waitcnt vmcnt({n})")
        self.q = self.q[i + 1:]

    def waitall(self):
        self.A("s_waitcnt vmcnt(0)"); self.q = []

    def ts(self, i):
        if not self.prof: return
        self.A("s_memrealtime s[14:15]"); self.A("s_waitcnt lgkmcnt(0)"); self.A(f"v_mov_b32 v{V_TS+i}, s14")

    def srd(self, r, base, off_lo, size, off_hi=None):
        if off_lo is None:
            self.A(f"s_mov_b32 s{r}, s{base}"); self.A(f"s_mov_b32 s{r+1}, s{base+1}")
        else:
            self.A(f"s_add_u32 s{r}, s{base}, {off_lo}"); self.A(f"s_addc_u32 s{r+1}, s{base+1}, 0")
        self.A(f"s_mov_b32 s{r+2}, {size}"); self.A(f"s_mov_b32 s{r+3}, 0x00020000")

    def row_allreduce(self, op, v, tmp=None):
        A = self.A
        for k in (8, 4, 2, 1):
            self.nop(2)
            A(f"{op}_dpp v{v}, v{v}, v{v} row_ror:{k} row_mask:0xf bank_mask:0xf")

    def swap_reduce(self, op, v, tmp, which):
        A = self.A
        A(f"v_mov_b32 v{tmp}, v{v}"); self.nop(2)
        A(f"v_permlane{which}_swap_b32 v{v}, v{tmp}"); self.nop(1)
        A(f"{op} v{v}, v{v}, v{tmp}")

    def wave_allreduce(self, op, v, tmp):
        self.row_allreduce(op, v)
        self.swap_reduce(op, v, tmp, 16)
        self.swap_reduce(op, v, tmp, 32)

    def rbf(self, dst, src):
        self.A(f"v_cvt_pk_bf16_f32 v{dst}, v{src}, v{src}")
        self.A(f"v_and_b32 v{dst}, 0xffff0000, v{dst}")

    def layernorm(self, xr, nreg, fr, half, outr):
        A = self.A
        n = 2 * nreg
        for i in range(nreg):
            A(f"v_lshlrev_b32 v{fr+2*i}, 16, v{xr+i}")
            A(f"v_and_b32 v{fr+2*i+1}, 0xffff0000, v{xr+i}")
        t0, t1, t2, t3 = V_T, V_T + 1, V_T + 2, V_T + 3
        A(f"v_add_f32 v{t0}, v{fr}, v{fr+1}")
        A(f"v_add_f32 v{t1}, v{fr+2}, v{fr+3}")
        for i in range(4, n, 2):
            A(f"v_add_f32 v{t0}, v{t0}, v{fr+i}")
            A(f"v_add_f32 v{t1}, v{t1}, v{fr+i+1}")
        A(f"v_add_f32 v{t0}, v{t0}, v{t1}")
        self.row_allreduce("v_add_f32", t0)
        self.swap_reduce("v_add_f32", t0, t1, 16)
        if not half: self.swap_reduce("v_add_f32", t0, t1, 32)
        A(f"v_mul_f32 v{t0}, 0x3b000000, v{t0}")
        A(f"v_sub_f32 v{t2}, v{fr}, v{t0}"); A(f"v_mul_f32 v{t1}, v{t2}, v{t2}")
        for i in range(1, n):
            A(f"v_sub_f32 v{t2}, v{fr+i}, v{t0}"); A(f"v_fma_f32 v{t1}, v{t2}, v{t2}, v{t1}")
        self.row_allreduce("v_add_f32", t1)
        self.swap_reduce("v_add_f32", t1, t2, 16)
        if not half: self.swap_reduce("v_add_f32", t1, t2, 32)
        A(f"v_mul_f32 v{t1}, 0x3b000000, v{t1}")
        self.rbf(t0, t0)
        self.rbf(t1, t1)
        A(f"v_add_f32 v{t1}, 0x3727c5ac, v{t1}")
        self.rbf(t1, t1)
        A(f"v_sqrt_f32 v{t1}, v{t1}"); self.nop(1)
        self.rbf(t1, t1)
        A(f"v_rcp_f32 v{t1}, v{t1}"); self.nop(1)
        for i in range(n):
            A(f"v_sub_f32 v{fr+i}, v{fr+i}, v{t0}")
        for i in range(nreg):
            A(f"v_cvt_pk_bf16_f32 v{outr+i}, v{fr+2*i}, v{fr+2*i+1}")
        for i in range(nreg):
            A(f"v_lshlrev_b32 v{fr+2*i}, 16, v{outr+i}")
            A(f"v_and_b32 v{fr+2*i+1}, 0xffff0000, v{outr+i}")
        for i in range(n):
            A(f"v_mul_f32 v{fr+i}, v{fr+i}, v{t1}")
        for i in range(nreg):
            A(f"v_cvt_pk_bf16_f32 v{outr+i}, v{fr+2*i}, v{fr+2*i+1}")

    def abuild(self, dst, src, t):
        for r in range(4):
            self.A(f"v_and_b32_dpp v{dst+r}, v{src}, v{V_MASK+r} row_newbcast:{t} row_mask:0xf bank_mask:0xf")

    def issue_k(self, it, t):
        off = (t & 3) * 1024
        o = f" offset:{off}" if off else ""
        self.vm(f"buffer_load_dwordx4 v[{V_KB+4*t}:{V_KB+4*t+3}], v{V_L16}, s[{R_K}:{R_K+3}], s{S_KO} offen{o} nt", ("k", t))
        if (t & 3) == 3: self.A(f"s_add_u32 s{S_KO}, s{S_KO}, 0x10000")

    def issue_v(self, it, t):
        off = (t & 3) * 1024
        o = f" offset:{off}" if off else ""
        self.vm(f"buffer_load_dwordx4 a[{A_VB+4*t}:{A_VB+4*t+3}], v{V_L16}, s[{R_V}:{R_V+3}], s{S_VO} offen{o} nt", ("v", t))
        if (t & 3) == 3: self.A(f"s_add_u32 s{S_VO}, s{S_VO}, 0x10000")

    def iteration(self, it, reissue=True, extras=None):
        A = self.A
        for t in range(16):
            self.wait(("k", t))
            k = V_KB + 4 * t
            A(f"v_dot2_f32_bf16 v{V_S+t}, v{k}, v{V_Q}, 0")
            for j in range(1, 4):
                A(f"v_dot2_f32_bf16 v{V_S+t}, v{k+j}, v{V_Q+j}, v{V_S+t}")
            if reissue: self.issue_k(it, t)
            if extras and ("k", t) in extras: extras[("k", t)]()
        S = V_S
        self.nop(3)
        for t in range(8):
            A(f"v_add_f32_dpp v{S+t}, v{S+t}, v{S+t} row_ror:8 row_mask:0xf bank_mask:0x3")
        for t in range(8):
            A(f"v_add_f32_dpp v{S+t}, v{S+t+8}, v{S+t+8} row_ror:8 row_mask:0xf bank_mask:0xc")
        for t in range(4):
            A(f"v_add_f32_dpp v{S+t}, v{S+t}, v{S+t} row_shl:4 row_mask:0xf bank_mask:0x5")
        for t in range(4):
            A(f"v_add_f32_dpp v{S+t}, v{S+t+4}, v{S+t+4} row_shr:4 row_mask:0xf bank_mask:0xa")
        self.nop(1)
        T = V_T
        A(f"v_add_f32_dpp v{T}, v{S}, v{S} quad_perm:[2,3,0,1] row_mask:0xf bank_mask:0xf")
        A(f"v_add_f32_dpp v{T+1}, v{S+1}, v{S+1} quad_perm:[2,3,0,1] row_mask:0xf bank_mask:0xf")
        A(f"v_add_f32_dpp v{T+2}, v{S+2}, v{S+2} quad_perm:[2,3,0,1] row_mask:0xf bank_mask:0xf")
        A(f"v_add_f32_dpp v{T+3}, v{S+3}, v{S+3} quad_perm:[2,3,0,1] row_mask:0xf bank_mask:0xf")
        A(f"v_cndmask_b32_e64 v{S}, v{T}, v{T+2}, s[{S_M2}:{S_M2+1}]")
        A(f"v_cndmask_b32_e64 v{S+1}, v{T+1}, v{T+3}, s[{S_M2}:{S_M2+1}]")
        self.nop(2)
        A(f"v_add_f32_dpp v{T}, v{S}, v{S} quad_perm:[1,0,3,2] row_mask:0xf bank_mask:0xf")
        A(f"v_add_f32_dpp v{T+1}, v{S+1}, v{S+1} quad_perm:[1,0,3,2] row_mask:0xf bank_mask:0xf")
        A(f"v_cndmask_b32_e64 v{T}, v{T}, v{T+1}, s[{S_M1}:{S_M1+1}]")
        s = T; mx = T + 1; tmp = T + 2; al = T + 3; e = T + 4; P2 = T + 5
        self.rbf(s, s)
        A(f"v_mul_f32 v{s}, 0x{SCALE:x}, v{s}")
        self.rbf(s, s)
        A(f"v_mov_b32 v{mx}, v{s}")
        self.wave_allreduce("v_max_f32", mx, tmp)
        A(f"v_max_f32 v{mx}, v{mx}, v{V_M}")
        A(f"v_sub_f32 v{al}, v{V_M}, v{mx}")
        A(f"v_sub_f32 v{e}, v{s}, v{mx}")
        A(f"v_mul_f32 v{al}, 0x{LOG2E:x}, v{al}")
        A(f"v_mul_f32 v{e}, 0x{LOG2E:x}, v{e}")
        A(f"v_exp_f32 v{al}, v{al}")
        A(f"v_exp_f32 v{e}, v{e}")
        A(f"v_mov_b32 v{V_M}, v{mx}")
        A(f"v_cvt_pk_bf16_f32 v{P2}, v{e}, v{e}")
        A(f"v_fma_f32 v{V_L}, v{V_L}, v{al}, v{e}")
        for r in range(4):
            A(f"v_mul_f32 v{V_D+r}, v{V_D+r}, v{al}")
        self.abuild(V_A0, P2, 0)
        for t in range(16):
            a = V_A0 if (t & 1) == 0 else V_A1
            an = V_A1 if (t & 1) == 0 else V_A0
            if t < 15: self.abuild(an, P2, t + 1)
            else: self.nop(2)
            self.wait(("v", t))
            A(f"v_mfma_f32_16x16x32_bf16 v[{V_D}:{V_D+3}], v[{a}:{a+3}], a[{A_VB+4*t}:{A_VB+4*t+3}], v[{V_D}:{V_D+3}]")
            if reissue: self.issue_v(it, t)
            if extras and ("v", t) in extras: extras[("v", t)]()

    def issue_wo(self, t):
        self.vm(f"buffer_load_dwordx4 a[{A_W+4*t}:{A_W+4*t+3}], v{V_T0}, s[{R_WO}:{R_WO+3}], s{S_WOFF} offen{self.o.get('wflag','')}", ("wo", t))
        self.A(f"s_add_u32 s{S_WOFF}, s{S_WOFF}, 4096")

    def dump(self, name, slot, regs, lanes_all=True):
        pass

    def any_sentinel(self, regs, tmp):
        A = self.A
        regs = list(regs)
        if len(regs) == 1:
            A(f"v_cmp_eq_u32 vcc, -1, v{regs[0]}"); return
        if len(regs) == 2:
            A(f"v_max_u32 v{tmp}, v{regs[0]}, v{regs[1]}"); rest = []
        else:
            A(f"v_max3_u32 v{tmp}, v{regs[0]}, v{regs[1]}, v{regs[2]}"); rest = regs[3:]
        while rest:
            if len(rest) >= 2:
                A(f"v_max3_u32 v{tmp}, v{tmp}, v{rest[0]}, v{rest[1]}"); rest = rest[2:]
            else:
                A(f"v_max_u32 v{tmp}, v{tmp}, v{rest[0]}"); rest = rest[1:]
        A(f"v_cmp_eq_u32 vcc, -1, v{tmp}")

    def poll_loop(self, name, loads, regs, tmp, bound=20000):
        A = self.A
        A(f"s_mov_b32 s{S_CNT}, {bound}")
        self.lab(f"L_poll_{name}")
        loads()
        A("s_waitcnt vmcnt(0)")
        self.any_sentinel(regs, tmp)
        A(f"s_sub_u32 s{S_CNT}, s{S_CNT}, 1")
        A(f"s_cbranch_scc1 L_pollx_{name}")
        self.nop(1)
        A(f"s_cbranch_vccnz L_poll_{name}")
        self.lab(f"L_pollx_{name}")

    def check_flags(self, name):
        A = self.A
        A(f"v_lshlrev_b32 v{V_T+1}, 2, v{V_LANE}")
        A(f"s_mov_b32 s{S_CNT}, 20000")
        self.lab(f"L_flag_{name}")
        A(f"buffer_load_dword v{V_T}, v{V_T+1}, s[{R_DBG}:{R_DBG+3}], 0 offen sc1")
        A("s_waitcnt vmcnt(0)")
        A(f"v_cmp_ne_u32 vcc, 0x01010101, v{V_T}")
        A(f"s_sub_u32 s{S_CNT}, s{S_CNT}, 1")
        A(f"s_cbranch_scc1 L_flagx_{name}")
        self.nop(1)
        A(f"s_cbranch_vccnz L_flag_{name}")
        self.lab(f"L_flagx_{name}")

    def build(self):
        A = self.A; o = self.o
        self.L.append(HEADER.rstrip("\n"))
        self.L.append(f"; @launch grid=(256,1,1) block=(256,1,1) lds={LDS_TOTAL}")
        self.L.append('.amdgcn_target "amdgcn-amd-amdhsa--gfx950"')
        self.L.append(".text"); self.L.append(f".globl {KNAME}"); self.L.append(".p2align 8")
        self.L.append(f".type {KNAME},@function"); self.lab(KNAME)
        A("s_cmp_ge_u32 s2, 256"); A("s_cbranch_scc1 L_end")
        A("s_load_dwordx16 s[16:31], s[0:1], 0")
        A("s_load_dwordx8 s[32:39], s[0:1], 64")
        A("s_load_dwordx2 s[40:41], s[0:1], 96")
        if self.prof:
            A("s_memrealtime s[12:13]")
        A(f"v_lshrrev_b32 v{V_T0}, 6, v0")
        A(f"v_and_b32 v{V_LANE}, 63, v0")
        A(f"v_readfirstlane_b32 s{S_W}, v{V_T0}")
        A(f"v_lshlrev_b32 v{V_L16}, 4, v{V_LANE}")
        A(f"s_and_b32 s{S_XCD}, s2, 7"); A(f"s_lshr_b32 s{S_SLOT}, s2, 3")
        A(f"s_and_b32 s{S_SPLIT}, s{S_SLOT}, 3")
        A(f"s_lshr_b32 s10, s{S_SLOT}, 2")
        A(f"s_and_b32 s{S_B}, s10, 1")
        A(f"s_lshr_b32 s10, s10, 1")
        A(f"s_lshl_b32 s{S_H}, s{S_XCD}, 2"); A(f"s_add_u32 s{S_H}, s{S_H}, s10")
        A(f"s_lshl_b32 s{S_P}, s{S_H}, 2"); A(f"s_add_u32 s{S_P}, s{S_P}, s{S_SPLIT}")
        A(f"s_mov_b32 s{S_ROLE}, 0")
        A(f"s_lshl_b32 s10, s{S_SLOT}, 3"); A(f"s_add_u32 s10, s10, s{S_XCD}")
        A(f"s_lshl_b32 s11, s{S_XCD}, 2"); A(f"s_add_u32 s11, s11, s{S_SLOT}")
        A(f"s_cmp_lt_u32 s{S_SLOT}, 4"); A(f"s_cselect_b32 s{S_ROLE}, 3, 0"); A(f"s_cselect_b32 s{S_RIDX}, s11, 0")
        A("s_sub_u32 s11, s10, 32")
        A("s_cmp_lt_u32 s11, 28"); A(f"s_cselect_b32 s{S_ROLE}, 2, s{S_ROLE}"); A(f"s_cselect_b32 s{S_RIDX}, s11, s{S_RIDX}")
        A("s_sub_u32 s11, s10, 64")
        A("s_cmp_lt_u32 s11, 64"); A(f"s_cselect_b32 s{S_ROLE}, 1, s{S_ROLE}"); A(f"s_cselect_b32 s{S_RIDX}, s11, s{S_RIDX}")
        A("s_waitcnt lgkmcnt(0)")
        if self.prof: A(f"v_mov_b32 v{V_TS}, s12")
        A(f"s_lshl_b32 s10, s{S_B}, 10")
        self.srd(R_X, P_X, "s10", 1024)
        self.vm(f"buffer_load_dwordx4 v[{V_X}:{V_X+3}], v{V_L16}, s[{R_X}:{R_X+3}], 0 offen", "x")
        A(f"s_lshl_b32 s10, s{S_H}, 8"); A(f"s_lshl_b32 s11, s{S_W}, 20"); A("s_add_u32 s10, s10, s11")
        A("s_sub_u32 s11, 0x400000, s10")
        self.srd(R_WQ, P_WQ, "s10", "s11")
        g = V_T; c = V_T + 1
        A(f"v_lshrrev_b32 v{g}, 4, v{V_LANE}"); A(f"v_and_b32 v{c}, 15, v{V_LANE}")
        A(f"v_lshlrev_b32 v{V_T0}, 13, v{g}"); A(f"v_lshl_or_b32 v{V_T0}, v{c}, 4, v{V_T0}")
        A(f"s_mov_b32 s{S_WOFF}, 0")
        for t in range(32):
            self.vm(f"buffer_load_dwordx4 a[{A_W+4*t}:{A_W+4*t+3}], v{V_T0}, s[{R_WQ}:{R_WQ+3}], s{S_WOFF} offen{o.get('wflag','')}", ("wq", t))
            if t < 31: A(f"s_add_u32 s{S_WOFF}, s{S_WOFF}, 0x8000")
        A(f"s_lshl_b32 s10, s{S_B}, 5"); A(f"s_add_u32 s10, s10, s{S_H}"); A("s_lshl_b32 s10, s10, 21")
        A(f"s_lshl_b32 s11, s{S_SPLIT}, 14"); A("s_add_u32 s10, s10, s11")
        A(f"s_lshl_b32 s11, s{S_W}, 12"); A("s_add_u32 s10, s10, s11")
        A("s_sub_u32 s11, 0x8000000, s10")
        self.srd(R_K, P_K, "s10", "s11")
        self.srd(R_V, P_V, "s10", "s11")
        A(f"s_mov_b32 s{S_KO}, 0"); A(f"s_mov_b32 s{S_VO}, 0")
        kvlate = o.get("kvlate", 0)
        nk0 = 16 if not kvlate else 0
        nv0 = 14 if not kvlate else 0
        for t in range(nk0): self.issue_k(0, t)
        for t in range(nv0): self.issue_v(0, t)
        A(f"s_lshl_b32 s10, s{S_H}, 17"); A(f"s_lshl_b32 s11, s{S_W}, 8"); A("s_add_u32 s10, s10, s11")
        A("s_sub_u32 s11, 0x400000, s10")
        self.srd(R_WO, P_WO, "s10", "s11")
        self.srd(R_WS, P_WS, None, WS_SIZE)
        self.srd(R_DBG, P_DBG, None, 256)
        self.srd(R_OUT, P_OUT, None, 2048)
        A(f"s_lshl_b32 s10, s{S_RIDX}, 7"); A(f"s_lshl_b32 s11, s{S_W}, 5"); A("s_add_u32 s10, s10, s11")
        A(f"s_mul_i32 s11, s{S_W}, {448*1024}"); A(f"s_lshl_b32 s12, s{S_RIDX}, 5"); A("s_add_u32 s11, s11, s12")
        A(f"s_cmp_eq_u32 s{S_ROLE}, 2")
        A("s_cselect_b32 s10, s10, s11")
        A(f"s_cselect_b32 s12, s{P_W1}, s{P_W2}"); A(f"s_cselect_b32 s13, s{P_W1+1}, s{P_W2+1}")
        A(f"s_cselect_b32 s{R_BIAS}, s{P_B1}, s{P_B2}"); A(f"s_cselect_b32 s{R_BIAS+1}, s{P_B1+1}, s{P_B2+1}")
        A("s_mov_b32 s14, 3584"); A(f"s_cselect_b32 s{R_BIAS+2}, s14, 1024"); A(f"s_mov_b32 s{R_BIAS+3}, 0x00020000")
        A(f"s_add_u32 s{R_RW}, s12, s10"); A(f"s_addc_u32 s{R_RW+1}, s13, 0")
        A(f"s_sub_u32 s{R_RW+2}, {1792*512*2}, s10"); A(f"s_mov_b32 s{R_RW+3}, 0x00020000")
        A(f"s_mov_b32 s{S_M1}, 0xaaaaaaaa"); A(f"s_mov_b32 s{S_M1+1}, 0xaaaaaaaa")
        A(f"s_mov_b32 s{S_M2}, 0xcccccccc"); A(f"s_mov_b32 s{S_M2+1}, 0xcccccccc")
        t = V_T + 2
        A(f"v_and_b32 v{t}, 1, v{c}"); A(f"v_lshlrev_b32 v{t}, 4, v{t}")
        A(f"v_mov_b32 v{t+1}, 0xffff"); A(f"v_lshlrev_b32 v{t}, v{t}, v{t+1}")
        A(f"v_lshrrev_b32 v{t+1}, 1, v{c}")
        for r in range(4):
            A(f"v_cmp_eq_u32 vcc, {r}, v{t+1}"); self.nop(2)
            A(f"v_cndmask_b32 v{V_MASK+r}, 0, v{t}, vcc")
        self.wait("x")
        self.ts(1)
        self.layernorm(V_X, 4, V_S, False, V_X)
        A(f"s_lshl_b32 s10, s{S_W}, 11"); A(f"s_add_u32 s10, s10, {L_Y}")
        A(f"v_add_u32 v{V_T}, s10, v{V_L16}")
        A(f"ds_write_b128 v{V_T}, v[{V_X}:{V_X+3}]")
        A(f"v_lshrrev_b32 v{V_T+1}, 4, v{V_LANE}"); A(f"v_and_b32 v{V_T+2}, 15, v{V_LANE}")
        A(f"v_lshlrev_b32 v{V_T+2}, 3, v{V_T+2}"); A(f"v_lshl_or_b32 v{V_T+2}, v{V_T+1}, 1, v{V_T+2}")
        A(f"s_lshl_b32 s11, s{S_W}, 8"); A("s_add_u32 s10, s10, s11")
        A(f"v_add_u32 v{V_T+2}, s10, v{V_T+2}")
        A("s_waitcnt lgkmcnt(0)")
        Y2 = V_T + 6
        A(f"ds_read_u16 v{Y2}, v{V_T+2}"); A(f"ds_read_u16 v{Y2+1}, v{V_T+2} offset:128")
        A("s_waitcnt lgkmcnt(0)")
        A(f"v_lshl_or_b32 v{Y2}, v{Y2}, 16, v{Y2}"); A(f"v_lshl_or_b32 v{Y2+1}, v{Y2+1}, 16, v{Y2+1}")
        self.nop(2)
        self.ts(2)
        self.abuild(V_A0, Y2, 0)
        for t in range(32):
            a = V_A0 if (t & 1) == 0 else V_A1
            an = V_A1 if (t & 1) == 0 else V_A0
            if t < 31: self.abuild(an, Y2 + ((t + 1) >> 4), (t + 1) & 15)
            else: self.nop(2)
            self.wait(("wq", t))
            if t == 0: self.ts(3)
            if t == 16: self.ts(4)
            if t == 31: self.ts(5)
            cc = "0" if t == 0 else f"v[{V_D}:{V_D+3}]"
            A(f"v_mfma_f32_16x16x32_bf16 v[{V_D}:{V_D+3}], v[{a}:{a+3}], a[{A_W+4*t}:{A_W+4*t+3}], {cc}")
            if t == 8 and not kvlate:
                self.issue_v(0, 14); self.issue_v(0, 15)
        if kvlate:
            for t in range(16): self.issue_k(0, t)
            for t in range(16): self.issue_v(0, t)
        A(f"v_lshrrev_b32 v{V_T}, 4, v{V_LANE}"); A(f"v_and_b32 v{V_T+1}, 15, v{V_LANE}")
        A(f"v_lshlrev_b32 v{V_T0}, 10, v{V_T}"); A(f"v_lshl_or_b32 v{V_T0}, v{V_T+1}, 4, v{V_T0}")
        A(f"s_mov_b32 s{S_WOFF}, 0")
        A(f"v_lshlrev_b32 v{V_T+2}, 5, v{V_T+1}"); A(f"v_lshl_or_b32 v{V_T+2}, v{V_T}, 4, v{V_T+2}")
        A(f"s_lshl_b32 s10, s{S_W}, 9"); A(f"s_add_u32 s10, s10, {L_Q}")
        A(f"v_add_u32 v{V_T+2}, s10, v{V_T+2}")
        self.nop(4)
        self.sexec(0xffffffff)
        A(f"ds_write_b128 v{V_T+2}, v[{V_D}:{V_D+3}]")
        self.sexec(-1)
        for t in range(27): self.issue_wo(t)
        self.clears()
        A("s_waitcnt lgkmcnt(0)"); A("s_barrier")
        A(f"v_and_b32 v{V_T+1}, 15, v{V_LANE}"); A(f"v_lshlrev_b32 v{V_T+1}, 5, v{V_T+1}")
        A(f"v_add_u32 v{V_T+1}, {L_Q}, v{V_T+1}")
        F = V_S
        for w in range(4):
            d = F if w == 0 else F + 8
            A(f"ds_read_b128 v[{d}:{d+3}], v{V_T+1} offset:{w*512}")
            A(f"ds_read_b128 v[{d+4}:{d+7}], v{V_T+1} offset:{w*512+16}")
            if w > 0:
                A("s_waitcnt lgkmcnt(0)")
                for i in range(8): A(f"v_add_f32 v{F+i}, v{F+i}, v{F+8+i}")
        for i in range(4): A(f"v_cvt_pk_bf16_f32 v{V_Q+i}, v{F+2*i}, v{F+2*i+1}")
        A(f"v_mov_b32 v{V_M}, 0xff7fffff"); A(f"v_mov_b32 v{V_L}, 0")
        for r in range(4): A(f"v_mov_b32 v{V_D+r}, 0")
        self.ts(6)
        if "q" in self.dbg: self.dbg_store([V_Q, V_Q + 1, V_Q + 2, V_Q + 3], 0)
        self.iteration(0)
        self.ts(7)
        ex = {("k", 0): self.extras_it1}
        self.iteration(1, extras=ex)
        self.ts(8)
        self.q = [(t, op) for (t, op) in self.q if not op and t[0] != "wo"]
        q0 = list(self.q)
        A(f"s_mov_b32 s{S_CNT}, 5")
        self.lab("L_loop")
        self.iteration(2)
        assert self.q == q0, (self.q, q0)
        A(f"s_sub_u32 s{S_CNT}, s{S_CNT}, 1"); A(f"s_cmp_lg_u32 s{S_CNT}, 0"); A("s_cbranch_scc1 L_loop")
        self.iteration(7, reissue=False)
        assert not self.q, self.q
        self.ts(9)
        self.combine_and_project()
        self.ts(10)
        A(f"s_cmp_eq_u32 s{S_ROLE}, 1"); A("s_cbranch_scc1 L_red")
        A(f"s_cmp_eq_u32 s{S_ROLE}, 2"); A("s_cbranch_scc1 L_mlp1")
        A(f"s_cmp_eq_u32 s{S_ROLE}, 3"); A("s_cbranch_scc1 L_mlp2")
        A("s_branch L_fin")
        self.role_red()
        A("s_branch L_fin")
        self.role_mlp1()
        A("s_branch L_fin")
        self.role_mlp2()
        self.lab("L_fin")
        if self.prof:
            self.ts(13)
            A("s_lshl_b32 s10, s2, 2"); A(f"s_add_u32 s10, s10, s{S_W}"); A("s_lshl_b32 s10, s10, 6"); A(f"s_add_u32 s10, s10, {WS_TS}")
            A("s_getreg_b32 s11, hwreg(HW_REG_XCC_ID)"); A(f"v_mov_b32 v{V_TS+15}, s11")
            A(f"v_mov_b32 v{V_T}, s10")
            self.sexec(1)
            for i in range(4):
                A(f"buffer_store_dwordx4 v[{V_TS+4*i}:{V_TS+4*i+3}], v{V_T}, s[{R_WS}:{R_WS+3}], 0 offen offset:{16*i}")
        A("s_waitcnt vmcnt(0)")
        self.lab("L_end"); A("s_endpgm")
        self.L += ['.section .rodata,"a"', ".p2align 6", f".amdhsa_kernel {KNAME}",
                   "  .amdhsa_next_free_vgpr 512", "  .amdhsa_next_free_sgpr 102", "  .amdhsa_accum_offset 256",
                   "  .amdhsa_group_segment_fixed_size 0", "  .amdhsa_kernarg_size 104", "  .amdhsa_user_sgpr_count 2",
                   "  .amdhsa_user_sgpr_kernarg_segment_ptr 1", "  .amdhsa_system_sgpr_workgroup_id_x 1", ".end_amdhsa_kernel"]
        return "\n".join(self.L) + "\n"

    def dbg_store(self, regs, slot):
        A = self.A
        A("s_waitcnt vmcnt(0) lgkmcnt(0)")
        A("s_lshl_b32 s10, s2, 2"); A(f"s_add_u32 s10, s10, s{S_W}"); A("s_lshl_b32 s10, s10, 10")
        A(f"s_add_u32 s10, s10, {WS_DBG + slot*0x100000}")
        A(f"v_add_u32 v{V_T+16}, s10, v{V_L16}")
        self.nop(8)
        for i, r in enumerate(regs):
            A(f"buffer_store_dword v{r}, v{V_T+16}, s[{R_WS}:{R_WS+3}], 0 offen offset:{4*i}")
        A("s_waitcnt vmcnt(0)")

    def p_offset(self, v, w_sgpr_expr_is_wave=True):
        A = self.A
        A(f"v_and_b32 v{v}, 15, v{V_LANE}")
        A(f"v_lshrrev_b32 v{v+1}, 1, v{v}"); A(f"v_lshlrev_b32 v{v+1}, 13, v{v+1}")
        A(f"v_and_b32 v{v}, 1, v{v}"); A(f"v_lshl_or_b32 v{v+1}, v{v}, 5, v{v+1}")
        A(f"v_lshrrev_b32 v{v}, 4, v{V_LANE}"); A(f"v_lshl_or_b32 v{v}, v{v}, 4, v{v+1}")
        A(f"s_lshl_b32 s10, s{S_B}, 5"); A(f"s_lshl_b32 s11, s{S_W}, 3"); A("s_add_u32 s10, s10, s11")
        A("s_lshl_b32 s10, s10, 13"); A(f"s_lshl_b32 s11, s{S_P}, 6"); A("s_add_u32 s10, s10, s11")
        A(f"v_add_u32 v{v}, s10, v{v}")

    def clears(self):
        A = self.A
        A(f"s_cmp_lg_u32 s{S_W}, 0"); A("s_cbranch_scc1 L_noclear")
        Z = V_S
        for i in range(4): A(f"v_mov_b32 v{Z+i}, -1")
        v = V_S + 4
        A(f"v_lshrrev_b32 v{v}, 2, v{V_LANE}"); A(f"v_lshlrev_b32 v{v}, 13, v{v}")
        A(f"v_and_b32 v{v+1}, 3, v{V_LANE}"); A(f"v_lshl_or_b32 v{v}, v{v+1}, 4, v{v}")
        A(f"s_lshl_b32 s10, s{S_B}, 18"); A(f"s_lshl_b32 s11, s{S_P}, 6"); A("s_add_u32 s10, s10, s11")
        A(f"v_add_u32 v{v}, s10, v{v}")
        self.vm(f"buffer_store_dwordx4 v[{Z}:{Z+3}], v{v}, s[{R_WS}:{R_WS+3}], 0 offen sc1", "clr", True)
        A(f"s_mov_b32 s11, {16*8192}")
        self.vm(f"buffer_store_dwordx4 v[{Z}:{Z+3}], v{v}, s[{R_WS}:{R_WS+3}], s11 offen sc1", "clr", True)
        A(f"s_lshl_b32 s10, s{S_B}, 7"); A(f"s_add_u32 s10, s10, s{S_P}"); A("s_lshl_b32 s10, s10, 3"); A(f"s_add_u32 s10, s10, {WS_ML}")
        A(f"v_lshlrev_b32 v{v+1}, 2, v{V_LANE}"); A(f"v_add_u32 v{v}, s10, v{v+1}")
        self.sexec(3)
        self.vm(f"buffer_store_dword v{Z}, v{v}, s[{R_WS}:{R_WS+3}], 0 offen sc1", "clr", True)
        A(f"s_cmp_eq_u32 s{S_ROLE}, 1"); A("s_cbranch_scc0 L_clr2")
        A(f"s_lshl_b32 s10, s{S_RIDX}, 5")
        A(f"s_add_u32 s10, s10, {WS_H}")
        self.sexec(0xff)
        A(f"v_add_u32 v{v}, s10, v{v+1}")
        A(f"buffer_store_dword v{Z}, v{v}, s[{R_WS}:{R_WS+3}], 0 offen sc1")
        self.lab("L_clr2")
        A(f"s_cmp_eq_u32 s{S_ROLE}, 2"); A("s_cbranch_scc0 L_clr3")
        self.sexec(-1)
        A(f"v_lshrrev_b32 v{v}, 5, v{V_LANE}"); A(f"v_mul_u32_u24 v{v}, 3584, v{v}")
        A(f"v_and_b32 v{v+1}, 31, v{V_LANE}"); A(f"v_lshl_add_u32 v{v}, v{v+1}, 2, v{v}")
        A(f"s_lshl_b32 s10, s{S_RIDX}, 7"); A(f"s_add_u32 s10, s10, {WS_G}")
        A(f"v_add_u32 v{v}, s10, v{v}")
        A(f"buffer_store_dword v{Z}, v{v}, s[{R_WS}:{R_WS+3}], 0 offen sc1")
        self.lab("L_clr3")
        self.q.append(("clr", True))
        assert len(self.q) <= 63, len(self.q)
        self.sexec(-1)
        self.lab("L_noclear")

    def extras_it1(self):
        A = self.A
        A(f"s_cmp_lg_u32 s{S_W}, 0"); A("s_cbranch_scc1 L_noflag")
        A(f"v_mov_b32 v{V_T+8}, 1"); A(f"v_mov_b32 v{V_T+9}, s2")
        self.sexec(1)
        self.vm(f"buffer_store_byte v{V_T+8}, v{V_T+9}, s[{R_DBG}:{R_DBG+3}], 0 offen sc1", "flag", True)
        self.sexec(-1)
        self.lab("L_noflag")
        for t in range(27, 32): self.issue_wo(t)
        A(f"s_cmp_lt_u32 s{S_ROLE}, 2"); A("s_cbranch_scc1 L_norw")
        A(f"s_cmp_eq_u32 s{S_ROLE}, 2"); A("s_mov_b32 s11, 3584"); A("s_cselect_b32 s10, s11, 1024")
        A(f"v_lshrrev_b32 v{V_T+8}, 1, v{V_LANE}"); A(f"v_mul_lo_u32 v{V_T+8}, v{V_T+8}, s10")
        A(f"v_and_b32 v{V_T+9}, 1, v{V_LANE}"); A(f"v_lshl_add_u32 v{V_T+8}, v{V_T+9}, 4, v{V_T+8}")
        A("s_lshl_b32 s10, s10, 5")
        A("s_mov_b32 s11, 0")
        A(f"s_lshl_b32 s12, s{S_W}, 14")
        for i in range(16):
            if i == 14:
                A(f"s_cmp_eq_u32 s{S_ROLE}, 3"); A("s_cbranch_scc1 L_norw")
            A("s_mov_b32 m0, s12"); A("s_add_u32 s12, s12, 1024")
            self.vm(f"buffer_load_dwordx4 v{V_T+8}, s[{R_RW}:{R_RW+3}], s11 offen nt lds", "rw", True)
            A("s_add_u32 s11, s11, s10")
        self.lab("L_norw")

    def combine_and_project(self):
        A = self.A
        T = V_T
        self.wave_allreduce("v_add_f32", V_L, T)
        A(f"v_lshrrev_b32 v{T}, 4, v{V_LANE}"); A(f"v_and_b32 v{T+1}, 15, v{V_LANE}")
        A(f"v_lshlrev_b32 v{T+2}, 5, v{T+1}"); A(f"v_lshl_or_b32 v{T+2}, v{T}, 4, v{T+2}")
        A(f"s_lshl_b32 s10, s{S_W}, 9"); A(f"s_add_u32 s10, s10, {L_O}")
        A(f"v_add_u32 v{T+2}, s10, v{T+2}")
        A(f"s_lshl_b32 s10, s{S_W}, 3"); A(f"s_add_u32 s10, s10, {L_ML}")
        A(f"v_mov_b32 v{T+3}, s10")
        self.nop(4)
        self.sexec(0xffffffff)
        A(f"ds_write_b128 v{T+2}, v[{V_D}:{V_D+3}]")
        self.sexec(1)
        A(f"ds_write_b64 v{T+3}, v[{V_M}:{V_M+1}]")
        self.sexec(-1)
        A(f"v_lshlrev_b32 v{T+2}, 4, v{T+1}"); A(f"v_lshl_or_b32 v{T+2}, v{T}, 2, v{T+2}")
        A(f"v_add_u32 v{T+2}, {L_O}, v{T+2}")
        A(f"v_mov_b32 v{T+3}, {L_ML}")
        A("s_waitcnt lgkmcnt(0)"); A("s_barrier")
        ML = V_S
        OV = V_S + 8
        A(f"ds_read_b128 v[{ML}:{ML+3}], v{T+3}"); A(f"ds_read_b128 v[{ML+4}:{ML+7}], v{T+3} offset:16")
        for w in range(4):
            for u in range(2):
                A(f"ds_read_b32 v{OV+2*w+u}, v{T+2} offset:{w*512+u*256}")
        A("s_waitcnt lgkmcnt(8)")
        M = T + 4
        A(f"v_max_f32 v{M}, v{ML}, v{ML+2}"); A(f"v_max3_f32 v{M}, v{M}, v{ML+4}, v{ML+6}")
        for w in range(4):
            A(f"v_sub_f32 v{ML+2*w}, v{ML+2*w}, v{M}")
        for w in range(4):
            A(f"v_mul_f32 v{ML+2*w}, 0x{LOG2E:x}, v{ML+2*w}")
        for w in range(4):
            A(f"v_exp_f32 v{ML+2*w}, v{ML+2*w}")
        Ls = T + 5
        A(f"v_mul_f32 v{Ls}, v{ML}, v{ML+1}")
        for w in range(1, 4): A(f"v_fma_f32 v{Ls}, v{ML+2*w}, v{ML+2*w+1}, v{Ls}")
        A("s_waitcnt lgkmcnt(0)")
        O2 = T + 6
        for u in range(2):
            A(f"v_mul_f32 v{O2+u}, v{ML}, v{OV+u}")
        for w in range(1, 4):
            for u in range(2):
                A(f"v_fma_f32 v{O2+u}, v{ML+2*w}, v{OV+2*w+u}, v{O2+u}")
        for u in range(2):
            A(f"v_cvt_pk_bf16_f32 v{O2+u}, v{O2+u}, v{O2+u}")
        A(f"v_min_u32 v{M}, -2, v{M}"); A(f"v_min_u32 v{Ls}, -2, v{Ls}")
        A(f"s_lshl_b32 s10, s{S_B}, 7"); A(f"s_add_u32 s10, s10, s{S_P}"); A("s_lshl_b32 s10, s10, 3"); A(f"s_add_u32 s10, s10, {WS_ML}")
        A(f"v_mov_b32 v{T+8}, s10")
        A(f"s_cmp_lg_u32 s{S_W}, 0"); A("s_cbranch_scc1 L_noml")
        self.sexec(1)
        assert M % 2 == 0 and Ls == M + 1
        A(f"buffer_store_dwordx2 v[{M}:{M+1}], v{T+8}, s[{R_WS}:{R_WS+3}], 0 offen sc1")
        self.sexec(-1)
        self.lab("L_noml")
        self.abuild(V_A0, O2, 0)
        for t in range(32):
            a = V_A0 if (t & 1) == 0 else V_A1
            an = V_A1 if (t & 1) == 0 else V_A0
            if t < 31: self.abuild(an, O2 + ((t + 1) >> 4), (t + 1) & 15)
            else: self.nop(2)
            cc = "0" if t == 0 else f"v[{V_D}:{V_D+3}]"
            A(f"v_mfma_f32_16x16x32_bf16 v[{V_D}:{V_D+3}], v[{a}:{a+3}], a[{A_W+4*t}:{A_W+4*t+3}], {cc}")
        self.p_offset(T + 8)
        self.nop(2)
        for r in range(4): A(f"v_min_u32 v{V_D+r}, -2, v{V_D+r}")
        self.sexec(0xffffffff)
        A(f"buffer_store_dwordx4 v[{V_D}:{V_D+3}], v{T+8}, s[{R_WS}:{R_WS+3}], 0 offen sc1")
        self.sexec(-1)

    def role_red(self):
        A = self.A; T = V_T
        self.lab("L_red")
        self.srd(R_X, P_X, None, 2048)
        A(f"s_lshl_b32 s10, s{S_RIDX}, 5")
        A(f"v_and_b32 v{T+2}, 15, v{V_LANE}"); A(f"v_lshlrev_b32 v{T+2}, 1, v{T+2}"); A(f"v_add_u32 v{T+2}, s10, v{T+2}")
        XS = V_X
        A(f"buffer_load_ushort v{XS}, v{T+2}, s[{R_X}:{R_X+3}], 0 offen")
        self.check_flags("red")
        A(f"s_lshl_b32 s10, s{S_RIDX}, 13")
        A(f"v_lshlrev_b32 v{T+2}, 4, v0"); A(f"v_add_u32 v{T+2}, s10, v{T+2}")
        A(f"s_lshr_b32 s11, s{S_RIDX}, 5"); A("s_lshl_b32 s11, s11, 10"); A(f"s_add_u32 s11, s11, {WS_ML}")
        A(f"v_lshrrev_b32 v{T+3}, 2, v0"); A(f"v_lshlrev_b32 v{T+3}, 3, v{T+3}"); A(f"v_add_u32 v{T+3}, s11, v{T+3}")
        PA = V_S; PB = V_S + 4; MA = V_S + 8; MB = V_S + 10
        A("s_mov_b32 s12, 4096")
        def loads():
            A(f"buffer_load_dwordx4 v[{PA}:{PA+3}], v{T+2}, s[{R_WS}:{R_WS+3}], 0 offen sc1")
            A(f"buffer_load_dwordx4 v[{PB}:{PB+3}], v{T+2}, s[{R_WS}:{R_WS+3}], s12 offen sc1")
            A(f"buffer_load_dwordx2 v[{MA}:{MA+1}], v{T+3}, s[{R_WS}:{R_WS+3}], 0 offen sc1")
            A(f"buffer_load_dwordx2 v[{MB}:{MB+1}], v{T+3}, s[{R_WS}:{R_WS+3}], 0 offen offset:512 sc1")
        self.poll_loop("red", loads, range(V_S, V_S + 12), T + 4)
        self.ts(11)
        for (Mr, P) in ((MA, PA), (MB, PB)):
            mx = T + 4; e = T + 5; l = T + 6
            A(f"v_mov_b32 v{mx}, v{Mr}"); self.nop(2)
            A(f"v_max_f32_dpp v{mx}, v{mx}, v{mx} row_ror:4 row_mask:0xf bank_mask:0xf"); self.nop(2)
            A(f"v_max_f32_dpp v{mx}, v{mx}, v{mx} row_ror:8 row_mask:0xf bank_mask:0xf")
            A(f"v_sub_f32 v{e}, v{Mr}, v{mx}"); A(f"v_mul_f32 v{e}, 0x{LOG2E:x}, v{e}"); A(f"v_exp_f32 v{e}, v{e}"); self.nop(1)
            A(f"v_mul_f32 v{l}, v{e}, v{Mr+1}"); self.nop(2)
            A(f"v_add_f32_dpp v{l}, v{l}, v{l} row_ror:4 row_mask:0xf bank_mask:0xf"); self.nop(2)
            A(f"v_add_f32_dpp v{l}, v{l}, v{l} row_ror:8 row_mask:0xf bank_mask:0xf")
            A(f"v_rcp_f32 v{l}, v{l}"); self.nop(1)
            A(f"v_mul_f32 v{e}, v{e}, v{l}")
            for r in range(4): A(f"v_mul_f32 v{P+r}, v{P+r}, v{e}")
        for r in range(4): A(f"v_add_f32 v{PA+r}, v{PA+r}, v{PB+r}")
        for k in (4, 8):
            self.nop(1)
            for r in range(4):
                A(f"v_add_f32_dpp v{PA+r}, v{PA+r}, v{PA+r} row_ror:{k} row_mask:0xf bank_mask:0xf")
        A(f"v_lshrrev_b32 v{T+4}, 4, v{V_LANE}"); A(f"v_and_b32 v{T+5}, 3, v{V_LANE}")
        A(f"v_lshlrev_b32 v{T+4}, 6, v{T+4}"); A(f"v_lshl_or_b32 v{T+4}, v{T+5}, 4, v{T+4}")
        A(f"s_lshl_b32 s10, s{S_W}, 8"); A(f"s_add_u32 s10, s10, {L_R}")
        A(f"v_add_u32 v{T+4}, s10, v{T+4}")
        self.sexec(0x000f000f000f000f)
        A(f"ds_write_b128 v{T+4}, v[{PA}:{PA+3}]")
        self.sexec(-1)
        A("s_waitcnt lgkmcnt(0)"); A("s_barrier")
        A(f"s_cmp_lg_u32 s{S_W}, 0"); A("s_cbranch_scc1 L_fin")
        A(f"v_lshrrev_b32 v{T+4}, 4, v{V_LANE}"); A(f"v_and_b32 v{T+5}, 15, v{V_LANE}")
        A(f"v_lshlrev_b32 v{T+4}, 8, v{T+4}"); A(f"v_lshl_or_b32 v{T+4}, v{T+5}, 2, v{T+4}")
        A(f"v_add_u32 v{T+4}, {L_R}, v{T+4}")
        for r in range(4): A(f"ds_read_b32 v{PA+r}, v{T+4} offset:{r*64}")
        A("s_waitcnt lgkmcnt(0)")
        A(f"v_add_f32 v{PA}, v{PA}, v{PA+1}"); A(f"v_add_f32 v{PA+2}, v{PA+2}, v{PA+3}"); A(f"v_add_f32 v{PA}, v{PA}, v{PA+2}")
        self.swap_reduce("v_add_f32", PA, T + 4, 16)
        self.swap_reduce("v_add_f32", PA, T + 4, 32)
        self.rbf(PA, PA)
        A(f"v_lshlrev_b32 v{XS}, 16, v{XS}")
        A(f"v_add_f32 v{PA}, v{PA}, v{XS}")
        self.nop(2)
        A(f"v_mov_b32_dpp v{PA+1}, v{PA} quad_perm:[1,1,3,3] row_mask:0xf bank_mask:0xf")
        A(f"v_cvt_pk_bf16_f32 v{PA}, v{PA}, v{PA+1}")
        A(f"v_min_u32 v{PA}, -2, v{PA}")
        A(f"s_lshl_b32 s10, s{S_RIDX}, 5"); A(f"s_add_u32 s10, s10, {WS_H}")
        A(f"v_and_b32 v{T+4}, 15, v{V_LANE}"); A(f"v_lshlrev_b32 v{T+4}, 1, v{T+4}"); A(f"v_add_u32 v{T+4}, s10, v{T+4}")
        self.sexec(0x5555)
        A(f"buffer_store_dword v{PA}, v{T+4}, s[{R_WS}:{R_WS+3}], 0 offen sc1")
        self.sexec(-1)
        self.ts(12)

    def tr_reads(self, n):
        A = self.A; T = V_T
        A(f"v_lshrrev_b32 v{T}, 4, v{V_LANE}"); A(f"v_lshlrev_b32 v{T}, 8, v{T}")
        A(f"v_bfe_u32 v{T+1}, v{V_LANE}, 2, 2"); A(f"v_lshl_or_b32 v{T}, v{T+1}, 5, v{T}")
        A(f"v_and_b32 v{T+1}, 3, v{V_LANE}"); A(f"v_lshl_or_b32 v{T}, v{T+1}, 3, v{T}")
        A(f"s_lshl_b32 s10, s{S_W}, 14"); A(f"v_add_u32 v{T}, s10, v{T}")
        for t in range(n):
            d = V_KB + 4 * t
            A(f"ds_read_b64_tr_b16 v[{d}:{d+1}], v{T} offset:{t*1024}")
            A(f"ds_read_b64_tr_b16 v[{d+2}:{d+3}], v{T} offset:{t*1024+128}")
            if t % 4 == 3: A("s_waitcnt lgkmcnt(0)")
        A("s_waitcnt lgkmcnt(0)")

    def gelu(self, x, t):
        A = self.A
        A(f"v_mul_f32 v{t}, v{x}, v{x}")
        A(f"v_mul_f32 v{t}, 0x3d372713, v{t}")
        A(f"v_fma_f32 v{t}, v{t}, v{x}, v{x}")
        A(f"v_mul_f32 v{t}, 0xc0135761, v{t}")
        A(f"v_exp_f32 v{t}, v{t}"); self.nop(1)
        A(f"v_add_f32 v{t}, 1.0, v{t}")
        A(f"v_rcp_f32 v{t}, v{t}"); self.nop(1)
        A(f"v_mul_f32 v{x}, v{x}, v{t}")

    def role_mlp1(self):
        A = self.A; T = V_T
        self.lab("L_mlp1")
        A(f"s_lshl_b32 s10, s{S_RIDX}, 7"); A(f"s_lshl_b32 s11, s{S_W}, 5"); A("s_add_u32 s10, s10, s11")
        A(f"v_and_b32 v{T+2}, 15, v{V_LANE}"); A(f"v_lshlrev_b32 v{T+2}, 1, v{T+2}"); A(f"v_add_u32 v{T+2}, s10, v{T+2}")
        BS = V_X
        A(f"buffer_load_ushort v{BS}, v{T+2}, s[{R_BIAS}:{R_BIAS+3}], 0 offen")
        self.tr_reads(16)
        for i in range(64): A(f"v_mov_b32 v{V_Z+i}, 0")
        self.check_flags("m1")
        A(f"v_lshlrev_b32 v{T+2}, 5, v{V_LANE}"); A(f"v_add_u32 v{T+2}, {WS_H}, v{T+2}")
        HR = V_A0
        def loads():
            A(f"buffer_load_dwordx4 v[{HR}:{HR+3}], v{T+2}, s[{R_WS}:{R_WS+3}], 0 offen sc1")
            A(f"buffer_load_dwordx4 v[{HR+4}:{HR+7}], v{T+2}, s[{R_WS}:{R_WS+3}], 0 offen offset:16 sc1")
        self.poll_loop("m1", loads, range(HR, HR + 8), T + 4)
        self.ts(11)
        self.layernorm(HR, 8, V_S, True, HR)
        A(f"s_lshl_b32 s10, s{S_W}, 11"); A(f"s_add_u32 s10, s10, {L_Y}")
        A(f"v_lshlrev_b32 v{T+2}, 5, v{V_LANE}"); A(f"v_add_u32 v{T+2}, s10, v{T+2}")
        A(f"ds_write_b128 v{T+2}, v[{HR}:{HR+3}]"); A(f"ds_write_b128 v{T+2}, v[{HR+4}:{HR+7}] offset:16")
        A(f"v_and_b32 v{T+3}, 15, v{V_LANE}"); A(f"v_lshlrev_b32 v{T+3}, 10, v{T+3}")
        A(f"v_lshrrev_b32 v{T+4}, 4, v{V_LANE}"); A(f"v_lshl_or_b32 v{T+3}, v{T+4}, 4, v{T+3}")
        A(f"v_add_u32 v{T+3}, s10, v{T+3}")
        A("s_waitcnt lgkmcnt(0)")
        self.sexec(0x0003000300030003)
        for t in range(16):
            A(f"ds_read_b128 v[{V_Z+4*t}:{V_Z+4*t+3}], v{T+3} offset:{t*64}")
        self.sexec(-1)
        for t in range(16):
            n = 15 - t
            A(f"s_waitcnt lgkmcnt({n})")
            if t == 0: self.nop(4)
            cc = "0" if t == 0 else f"v[{V_D}:{V_D+3}]"
            A(f"v_mfma_f32_16x16x32_bf16 v[{V_D}:{V_D+3}], v[{V_Z+4*t}:{V_Z+4*t+3}], v[{V_KB+4*t}:{V_KB+4*t+3}], {cc}")
        A(f"v_lshlrev_b32 v{BS}, 16, v{BS}")
        self.nop(8)
        for r in range(2):
            x = V_D + r
            self.rbf(x, x)
            A(f"v_add_f32 v{x}, v{x}, v{BS}")
            self.rbf(x, x)
            self.gelu(x, T + 4)
            self.nop(2)
            A(f"v_mov_b32_dpp v{T+4}, v{x} quad_perm:[1,1,3,3] row_mask:0xf bank_mask:0xf")
            A(f"v_cvt_pk_bf16_f32 v{x}, v{x}, v{T+4}")
            A(f"v_min_u32 v{x}, -2, v{x}")
        A(f"s_lshl_b32 s10, s{S_RIDX}, 7"); A(f"s_lshl_b32 s11, s{S_W}, 5"); A("s_add_u32 s10, s10, s11"); A(f"s_add_u32 s10, s10, {WS_G}")
        A(f"v_and_b32 v{T+2}, 15, v{V_LANE}"); A(f"v_lshlrev_b32 v{T+2}, 1, v{T+2}"); A(f"v_add_u32 v{T+2}, s10, v{T+2}")
        self.sexec(0x5555)
        A(f"buffer_store_dword v{V_D}, v{T+2}, s[{R_WS}:{R_WS+3}], 0 offen sc1")
        A(f"buffer_store_dword v{V_D+1}, v{T+2}, s[{R_WS}:{R_WS+3}], 0 offen offset:3584 sc1")
        self.sexec(-1)
        self.ts(12)

    def role_mlp2(self):
        A = self.A; T = V_T
        self.lab("L_mlp2")
        A(f"s_lshl_b32 s10, s{S_RIDX}, 5")
        A(f"v_and_b32 v{T+2}, 15, v{V_LANE}"); A(f"v_lshlrev_b32 v{T+2}, 1, v{T+2}"); A(f"v_add_u32 v{T+2}, s10, v{T+2}")
        BS = V_X; HS = V_X + 1
        A(f"buffer_load_ushort v{BS}, v{T+2}, s[{R_BIAS}:{R_BIAS+3}], 0 offen")
        self.tr_reads(14)
        for i in range(56): A(f"v_mov_b32 v{V_Z+i}, 0")
        self.check_flags("m2")
        A(f"v_and_b32 v{T+3}, 15, v{V_LANE}"); A(f"v_mul_u32_u24 v{T+3}, 3584, v{T+3}")
        A(f"v_lshrrev_b32 v{T+4}, 4, v{V_LANE}"); A(f"v_lshl_add_u32 v{T+3}, v{T+4}, 4, v{T+3}")
        A(f"s_mul_i32 s10, s{S_W}, 896"); A(f"s_add_u32 s10, s10, {WS_G}")
        A(f"v_add_u32 v{T+3}, s10, v{T+3}")
        A(f"v_bfe_u32 v{T+5}, v{V_LANE}, 4, 1"); A(f"v_lshlrev_b32 v{T+5}, 10, v{T+5}")
        A(f"v_and_b32 v{T+6}, 14, v{V_LANE}"); A(f"v_lshl_add_u32 v{T+5}, v{T+6}, 1, v{T+5}")
        A(f"s_lshl_b32 s10, s{S_RIDX}, 5"); A(f"s_add_u32 s10, s10, {WS_H}")
        A(f"v_add_u32 v{T+5}, s10, v{T+5}")
        def loadh():
            A(f"buffer_load_dword v{HS}, v{T+5}, s[{R_WS}:{R_WS+3}], 0 offen sc1")
        self.poll_loop("m2h", loadh, [HS], T + 4)
        self.sexec(0x0003000300030003)
        def loads():
            for t in range(14):
                A(f"buffer_load_dwordx4 v[{V_Z+4*t}:{V_Z+4*t+3}], v{T+3}, s[{R_WS}:{R_WS+3}], 0 offen offset:{t*64} sc1")
        self.poll_loop("m2", loads, range(V_Z, V_Z + 56), T + 4)
        self.sexec(-1)
        self.ts(11)
        self.nop(4)
        for t in range(14):
            cc = "0" if t == 0 else f"v[{V_D}:{V_D+3}]"
            A(f"v_mfma_f32_16x16x32_bf16 v[{V_D}:{V_D+3}], v[{V_Z+4*t}:{V_Z+4*t+3}], v[{V_KB+4*t}:{V_KB+4*t+3}], {cc}")
        A(f"v_and_b32 v{T+2}, 15, v{V_LANE}"); A(f"v_lshlrev_b32 v{T+2}, 2, v{T+2}")
        A(f"s_lshl_b32 s10, s{S_W}, 7"); A(f"s_add_u32 s10, s10, {L_R}"); A(f"v_add_u32 v{T+2}, s10, v{T+2}")
        self.nop(6)
        self.sexec(0xffff)
        A(f"ds_write_b32 v{T+2}, v{V_D}"); A(f"ds_write_b32 v{T+2}, v{V_D+1} offset:64")
        self.sexec(-1)
        A("s_waitcnt lgkmcnt(0)"); A("s_barrier")
        A(f"s_cmp_lg_u32 s{S_W}, 0"); A("s_cbranch_scc1 L_fin")
        A(f"v_and_b32 v{T+2}, 31, v{V_LANE}"); A(f"v_lshlrev_b32 v{T+2}, 2, v{T+2}"); A(f"v_add_u32 v{T+2}, {L_R}, v{T+2}")
        for w in range(4): A(f"ds_read_b32 v{V_S+w}, v{T+2} offset:{w*128}")
        A("s_waitcnt lgkmcnt(0)")
        x = V_S
        A(f"v_add_f32 v{x}, v{x}, v{x+1}"); A(f"v_add_f32 v{x+2}, v{x+2}, v{x+3}"); A(f"v_add_f32 v{x}, v{x}, v{x+2}")
        self.rbf(x, x)
        A(f"v_lshlrev_b32 v{BS}, 16, v{BS}")
        A(f"v_add_f32 v{x}, v{x}, v{BS}")
        self.rbf(x, x)
        A(f"v_and_b32 v{T+4}, 1, v{V_LANE}"); A(f"v_cmp_eq_u32 vcc, 1, v{T+4}")
        A(f"v_lshlrev_b32 v{T+5}, 16, v{HS}"); A(f"v_and_b32 v{T+6}, 0xffff0000, v{HS}")
        A(f"v_cndmask_b32 v{T+5}, v{T+5}, v{T+6}, vcc")
        A(f"v_add_f32 v{x}, v{x}, v{T+5}")
        self.nop(2)
        A(f"v_mov_b32_dpp v{T+4}, v{x} quad_perm:[1,1,3,3] row_mask:0xf bank_mask:0xf")
        A(f"v_cvt_pk_bf16_f32 v{x}, v{x}, v{T+4}")
        A(f"v_bfe_u32 v{T+5}, v{V_LANE}, 4, 1"); A(f"v_lshlrev_b32 v{T+5}, 10, v{T+5}")
        A(f"v_and_b32 v{T+6}, 15, v{V_LANE}"); A(f"v_lshl_add_u32 v{T+5}, v{T+6}, 1, v{T+5}")
        A(f"s_lshl_b32 s10, s{S_RIDX}, 5"); A(f"v_add_u32 v{T+5}, s10, v{T+5}")
        self.sexec(0x55555555)
        A(f"buffer_store_dword v{x}, v{T+5}, s[{R_OUT}:{R_OUT+3}], 0 offen")
        self.sexec(-1)
        self.ts(12)


def gen(prof=False, dbg=None, **opts):
    return Gen(prof=prof, dbg=dbg, opts=opts).build()


if __name__ == "__main__":
    out = sys.argv[1] if len(sys.argv) > 1 else "sequential_preLN__mha_block_cached__mixer_channel_mlp__decode.s"
    prof = "prof" in sys.argv[2:]
    opts = {}
    for a in sys.argv[2:]:
        if "=" in a:
            k, v = a.split("=", 1)
            try: v = int(v, 0)
            except ValueError: v = v.replace("_", " ")
            opts[k] = v
    open(out, "w").write(gen(prof=prof, **opts))
    print("wrote", out)
```

```python
import sys
KNAME = "sequential_preLN__mha_block_cached__mixer_channel_mlp__decode_kernel"

HEADER = """; Kernarg layout for this problem (104 bytes, ptrs only, base s[0:1]):
;   offset  32: d_in[4] A_wo  shape=(4096, 512) dtype=bfloat16 strides=(1024, 2) contiguous=True
;   offset  96: d_ws      536870912 bytes workspace
"""

WS_P = 0
WS_P2 = 0x80000
WS_ML = 0xA0000
WS_H = 0xA0800
WS_CLR_END = 0xA1000
WS_TS = 0x100000
WS_SIZE = 0x1000000
DBG_FLAG = 64

L_W1 = 0
L_Y = 65536
L_Q = L_Y + 8192
L_O = L_Q + 2048
L_ML = L_O + 2048
L_G = L_ML + 64
LDS_TOTAL = L_G + 512

S_W = 3; S_XCD = 4; S_SLOT = 5; S_B = 6; S_H = 7; S_SPLIT = 8; S_P = 9
P_X, P_K, P_V, P_WQ, P_WO, P_BX, P_W1, P_B1, P_W2, P_B2, P_OUT, P_DBG, P_WS = 16, 18, 20, 22, 24, 26, 28, 30, 32, 34, 36, 38, 40
R_K = 44; R_V = 48; R_WQ = 52; R_WO = 56; R_WS = 60; R_W1 = 64; R_X = 68; R_DBG = 72; R_OUT = 76
S_KO = 80; S_VO = 81; S_WOFF = 82; S_CNT = 83; S_ROLE = 84; S_RIDX = 85
S_M1 = 86; S_M2 = 88; S_VAR = 90; S_R0 = 91
R_W2 = 92; R_BIAS = 96
S_T0 = 42; S_T1 = 43

V_TID = 0; V_L16 = 1; V_LANE = 2; V_T0 = 3
V_Q = 4
V_MASK = 8
V_D = 12
V_A0 = 16; V_A1 = 20
V_S = 24
V_M = 40; V_L = 41
V_T = 42
V_X = 60
V_KB = 64
V_Z = 128
V_MASK2 = 192
V_FLAG = 196
V_W1E = 197; V_W1O = 198; V_W2O = 199
V_TS = 200
V_CL = 216
V_BS = 221; V_XS = 222; V_HK = 223
V_G = 224
V_DS = 240
A_VB = 0
A_W = 64
A_W2 = 192

LOG2E = 0x3fb8aa3b
SCALE = 0x3db504f3
NEGINF = 0xff800000


class Gen:
    def __init__(self, prof=False, opts=None):
        self.L = []
        self.q = []
        self.prof = prof
        self.o = opts or {}
        self.uid = 0
        self.done = set()

    def A(self, s):
        self.L.append("  " + s)

    def lab(self, s):
        self.L.append(s + ":")

    def newlab(self, s):
        self.uid += 1
        return f"L_{s}_{self.uid}"

    def capture(self, fn):
        old = self.L; self.L = []
        fn()
        out = self.L; self.L = old
        return out

    def sexec(self, m):
        if m == -1:
            self.A("s_mov_b64 exec, -1"); return
        lo, hi = m & 0xffffffff, m >> 32
        self.A(f"s_mov_b32 exec_lo, 0x{lo:x}"); self.A(f"s_mov_b32 exec_hi, 0x{hi:x}")

    def nop(self, n):
        while n > 0:
            k = min(n, 16); self.A(f"s_nop {k-1}"); n -= k

    def vm(self, text, tag=None):
        self.A(text)
        self.q.append(tag)
        assert len(self.q) <= 63, f"too many outstanding vmem ops: {len(self.q)} at {text}"

    def wait(self, tag):
        idx = [i for i, t in enumerate(self.q) if t == tag]
        if not idx:
            assert tag in self.done, f"tag {tag} never issued"
            return
        i = idx[-1]
        n = len(self.q) - 1 - i
        self.A(f"s_waitcnt vmcnt({n})")
        self.done.update(self.q[:i + 1])
        self.q = self.q[i + 1:]

    def waitall(self):
        self.A("s_waitcnt vmcnt(0)"); self.done.update(self.q); self.q = []

    def ts(self, i):
        if not self.prof: return
        self.A("s_memrealtime s[14:15]"); self.A("s_waitcnt lgkmcnt(0)"); self.A(f"v_mov_b32 v{V_TS+i}, s14")

    def diag(self, slot):
        if not self.o.get("diag"): return
        A = self.A
        A("s_memrealtime s[14:15]"); A("s_waitcnt lgkmcnt(0)")
        A(f"v_mov_b32 v{V_DS+slot}, s14")

    def srd(self, r, base, off_lo, size):
        if off_lo is None:
            self.A(f"s_mov_b32 s{r}, s{base}"); self.A(f"s_mov_b32 s{r+1}, s{base+1}")
        else:
            self.A(f"s_add_u32 s{r}, s{base}, {off_lo}"); self.A(f"s_addc_u32 s{r+1}, s{base+1}, 0")
        self.A(f"s_mov_b32 s{r+2}, {size}"); self.A(f"s_mov_b32 s{r+3}, 0x00020000")

    def row_allreduce(self, op, v):
        for k in (8, 4, 2, 1):
            self.nop(2)
            self.A(f"{op}_dpp v{v}, v{v}, v{v} row_ror:{k} row_mask:0xf bank_mask:0xf")

    def swap_reduce(self, op, v, tmp, which):
        A = self.A
        A(f"v_mov_b32 v{tmp}, v{v}"); self.nop(2)
        A(f"v_permlane{which}_swap_b32 v{v}, v{tmp}"); self.nop(1)
        A(f"{op} v{v}, v{v}, v{tmp}")

    def wave_allreduce(self, op, v, tmp):
        self.row_allreduce(op, v)
        self.swap_reduce(op, v, tmp, 16)
        self.swap_reduce(op, v, tmp, 32)

    def quad4_reduce(self, r):
        A = self.A
        self.nop(2)
        A(f"v_permlane32_swap_b32 v{r}, v{r+2}")
        A(f"v_permlane32_swap_b32 v{r+1}, v{r+3}")
        self.nop(1)
        A(f"v_add_f32 v{r}, v{r}, v{r+2}")
        A(f"v_add_f32 v{r+1}, v{r+1}, v{r+3}")
        self.nop(2)
        A(f"v_permlane16_swap_b32 v{r}, v{r+1}")
        self.nop(1)
        A(f"v_add_f32 v{r}, v{r}, v{r+1}")
        self.row_allreduce("v_add_f32", r)

    def rbf(self, dst, src):
        self.A(f"v_cvt_pk_bf16_f32 v{dst}, v{src}, v{src}")
        self.A(f"v_and_b32 v{dst}, 0xffff0000, v{dst}")

    def ln_unpack(self, xr, nreg, fr):
        for i in range(nreg):
            self.A(f"v_lshlrev_b32 v{fr+2*i}, 16, v{xr+i}")
            self.A(f"v_and_b32 v{fr+2*i+1}, 0xffff0000, v{xr+i}")

    def ln_stats(self, nreg, fr, half):
        A = self.A
        n = 2 * nreg
        t0, t1, t2 = V_T, V_T + 1, V_T + 2
        A(f"v_add_f32 v{t0}, v{fr}, v{fr+1}")
        A(f"v_add_f32 v{t1}, v{fr+2}, v{fr+3}")
        for i in range(4, n, 2):
            A(f"v_add_f32 v{t0}, v{t0}, v{fr+i}")
            A(f"v_add_f32 v{t1}, v{t1}, v{fr+i+1}")
        A(f"v_add_f32 v{t0}, v{t0}, v{t1}")
        self.row_allreduce("v_add_f32", t0)
        self.swap_reduce("v_add_f32", t0, t1, 16)
        if not half: self.swap_reduce("v_add_f32", t0, t1, 32)
        A(f"v_mul_f32 v{t0}, 0x3b000000, v{t0}")
        A(f"v_sub_f32 v{t2}, v{fr}, v{t0}"); A(f"v_mul_f32 v{t1}, v{t2}, v{t2}")
        for i in range(1, n):
            A(f"v_sub_f32 v{t2}, v{fr+i}, v{t0}"); A(f"v_fma_f32 v{t1}, v{t2}, v{t2}, v{t1}")
        self.row_allreduce("v_add_f32", t1)
        self.swap_reduce("v_add_f32", t1, t2, 16)
        if not half: self.swap_reduce("v_add_f32", t1, t2, 32)
        A(f"v_mul_f32 v{t1}, 0x3b000000, v{t1}")
        self.rbf(t0, t0)
        self.rbf(t1, t1)
        A(f"v_add_f32 v{t1}, 0x3727c5ac, v{t1}")
        self.rbf(t1, t1)
        A(f"v_sqrt_f32 v{t1}, v{t1}"); self.nop(1)
        self.rbf(t1, t1)
        A(f"v_rcp_f32 v{t1}, v{t1}"); self.nop(1)

    def layernorm(self, xr, nreg, fr, half, outr):
        A = self.A
        n = 2 * nreg
        t0, t1 = V_T, V_T + 1
        self.ln_unpack(xr, nreg, fr)
        self.ln_stats(nreg, fr, half)
        for i in range(n):
            A(f"v_sub_f32 v{fr+i}, v{fr+i}, v{t0}")
        for i in range(nreg):
            A(f"v_cvt_pk_bf16_f32 v{outr+i}, v{fr+2*i}, v{fr+2*i+1}")
        self.ln_unpack(outr, nreg, fr)
        for i in range(n):
            A(f"v_mul_f32 v{fr+i}, v{fr+i}, v{t1}")
        for i in range(nreg):
            A(f"v_cvt_pk_bf16_f32 v{outr+i}, v{fr+2*i}, v{fr+2*i+1}")

    def abuild(self, dst, src, t):
        for r in range(4):
            self.A(f"v_and_b32_dpp v{dst+r}, v{src}, v{V_MASK+r} row_newbcast:{t} row_mask:0xf bank_mask:0xf")

    def goff(self, n, N):
        if n < 32: return n * 0x10000
        d = N - 32
        return (32 - d + (n - 32)) * 0x10000 + 0x8000

    def issue_kv(self, kind, n_groups, it, t):
        grp = 4 * it + (t >> 2)
        so = S_KO if kind == "k" else S_VO
        if (t & 3) == 0:
            self.A(f"s_mov_b32 s{so}, 0x{self.goff(grp, n_groups):x}")
        off = (t & 3) * 1024
        o = f" offset:{off}" if off else ""
        if kind == "k":
            self.vm(f"buffer_load_dwordx4 v[{V_KB+4*t}:{V_KB+4*t+3}], v{V_L16}, s[{R_K}:{R_K+3}], s{so} offen{o} nt", ("k", it, t))
        else:
            self.vm(f"buffer_load_dwordx4 a[{A_VB+4*t}:{A_VB+4*t+3}], v{V_L16}, s[{R_V}:{R_V+3}], s{so} offen{o} nt", ("v", it, t))

    def issue_wo(self, t):
        self.vm(f"buffer_load_dwordx4 a[{A_W+4*t}:{A_W+4*t+3}], v{V_T0}, s[{R_WO}:{R_WO+3}], s{S_WOFF} offen{self.o.get('woflag','')}", ("wo", t))
        self.A(f"s_add_u32 s{S_WOFF}, s{S_WOFF}, 4096")

    def issue_w(self, i):
        A = self.A
        fl = self.o.get('wflag', ' nt')
        if i < 16:
            A(f"s_lshl_b32 s10, s{S_W}, 14"); A(f"s_add_u32 m0, s10, {L_W1 + i*1024}")
            A(f"s_mov_b32 s11, {i*28672}")
            v = V_W1O if (i & 1) else V_W1E
            self.vm(f"buffer_load_dwordx4 v{v}, s[{R_W1}:{R_W1+3}], s11 offen{fl} lds", ("w", i))
        else:
            t = i - 16
            if (t & 3) == 0: A(f"s_mov_b32 s{S_WOFF}, {(t >> 2) * 4096}")
            off = (t & 3) * 1024
            o = f" offset:{off}" if off else ""
            self.vm(f"buffer_load_dwordx4 a[{A_W2+4*t}:{A_W2+4*t+3}], v{V_W2O}, s[{R_W2}:{R_W2+3}], s{S_WOFF} offen{o}{fl}", ("w", i))

    def iteration(self, N, it, extras):
        A = self.A
        ng = min(4, N - 4 * it)
        ngn = max(0, min(4, N - 4 * (it + 1)))
        nt = 4 * ng
        def hook(ph, t):
            for f in extras.get((it, ph, t), []): f()
        for t in range(nt, 16):
            A(f"v_mov_b32 v{V_S+t}, 0x{NEGINF:x}")
        for t in range(nt):
            self.wait(("k", it, t))
            k = V_KB + 4 * t
            A(f"v_dot2_f32_bf16 v{V_S+t}, v{k}, v{V_Q}, 0")
            for j in range(1, 4):
                A(f"v_dot2_f32_bf16 v{V_S+t}, v{k+j}, v{V_Q+j}, v{V_S+t}")
            if t < 4 * ngn: self.issue_kv("k", N, it + 1, t)
            hook("k", t)
        for t in range(nt, 4 * ngn): self.issue_kv("k", N, it + 1, t)
        S = V_S
        self.nop(3)
        for t in range(8):
            A(f"v_add_f32_dpp v{S+t}, v{S+t}, v{S+t} row_ror:8 row_mask:0xf bank_mask:0x3")
        for t in range(8):
            A(f"v_add_f32_dpp v{S+t}, v{S+t+8}, v{S+t+8} row_ror:8 row_mask:0xf bank_mask:0xc")
        for t in range(4):
            A(f"v_add_f32_dpp v{S+t}, v{S+t}, v{S+t} row_shl:4 row_mask:0xf bank_mask:0x5")
        for t in range(4):
            A(f"v_add_f32_dpp v{S+t}, v{S+t+4}, v{S+t+4} row_shr:4 row_mask:0xf bank_mask:0xa")
        self.nop(1)
        T = V_T
        A(f"v_add_f32_dpp v{T}, v{S}, v{S} quad_perm:[2,3,0,1] row_mask:0xf bank_mask:0xf")
        A(f"v_add_f32_dpp v{T+1}, v{S+1}, v{S+1} quad_perm:[2,3,0,1] row_mask:0xf bank_mask:0xf")
        A(f"v_add_f32_dpp v{T+2}, v{S+2}, v{S+2} quad_perm:[2,3,0,1] row_mask:0xf bank_mask:0xf")
        A(f"v_add_f32_dpp v{T+3}, v{S+3}, v{S+3} quad_perm:[2,3,0,1] row_mask:0xf bank_mask:0xf")
        A(f"v_cndmask_b32_e64 v{S}, v{T}, v{T+2}, s[{S_M2}:{S_M2+1}]")
        A(f"v_cndmask_b32_e64 v{S+1}, v{T+1}, v{T+3}, s[{S_M2}:{S_M2+1}]")
        self.nop(2)
        A(f"v_add_f32_dpp v{T}, v{S}, v{S} quad_perm:[1,0,3,2] row_mask:0xf bank_mask:0xf")
        A(f"v_add_f32_dpp v{T+1}, v{S+1}, v{S+1} quad_perm:[1,0,3,2] row_mask:0xf bank_mask:0xf")
        A(f"v_cndmask_b32_e64 v{T}, v{T}, v{T+1}, s[{S_M1}:{S_M1+1}]")
        s = T; mx = T + 1; tmp = T + 2; al = T + 3; e = T + 4; P2 = T + 5
        self.rbf(s, s)
        A(f"v_mul_f32 v{s}, 0x{SCALE:x}, v{s}")
        self.rbf(s, s)
        A(f"v_mov_b32 v{mx}, v{s}")
        self.wave_allreduce("v_max_f32", mx, tmp)
        A(f"v_max_f32 v{mx}, v{mx}, v{V_M}")
        A(f"v_sub_f32 v{al}, v{V_M}, v{mx}")
        A(f"v_sub_f32 v{e}, v{s}, v{mx}")
        A(f"v_mul_f32 v{al}, 0x{LOG2E:x}, v{al}")
        A(f"v_mul_f32 v{e}, 0x{LOG2E:x}, v{e}")
        A(f"v_exp_f32 v{al}, v{al}")
        A(f"v_exp_f32 v{e}, v{e}")
        A(f"v_mov_b32 v{V_M}, v{mx}")
        A(f"v_cvt_pk_bf16_f32 v{P2}, v{e}, v{e}")
        A(f"v_fma_f32 v{V_L}, v{V_L}, v{al}, v{e}")
        for r in range(4):
            A(f"v_mul_f32 v{V_D+r}, v{V_D+r}, v{al}")
        last = (ngn == 0)
        if last:
            self.wave_allreduce("v_add_f32", V_L, T + 6)
        hook("s", 0)
        self.abuild(V_A0, P2, 0)
        for t in range(nt):
            a = V_A0 if (t & 1) == 0 else V_A1
            an = V_A1 if (t & 1) == 0 else V_A0
            if t < nt - 1: self.abuild(an, P2, t + 1)
            else: self.nop(2)
            self.wait(("v", it, t))
            A(f"v_mfma_f32_16x16x32_bf16 v[{V_D}:{V_D+3}], v[{a}:{a+3}], a[{A_VB+4*t}:{A_VB+4*t+3}], v[{V_D}:{V_D+3}]")
            if t < 4 * ngn: self.issue_kv("v", N, it + 1, t)
            hook("v", t)
        for t in range(nt, 4 * ngn): self.issue_kv("v", N, it + 1, t)

    def stream(self, N, name):
        A = self.A; o = self.o
        nit = (N + 3) // 4
        extras = {}
        def add(key, f): extras.setdefault(key, []).append(f)
        pos = []
        for it in range(7):
            for t in (2, 6, 10, 14): pos.append((it, "k", t))
        for it in range(4): pos.append((it, "v", 8))
        pos.sort(key=lambda p: (p[0], p[1] == "v", p[2]))
        for i, p in enumerate(pos):
            add(p, (lambda i=i: self.issue_wo(i)))
        add((3, "k", 0), self.flag_issue)
        add((5, "s", 0), (lambda: self.flag_check(name)))
        order = []
        for it in range(nit):
            ng = min(4, N - 4 * it)
            order += [("k", it, t) for t in range(4 * ng)] + [("v", it, t) for t in range(4 * ng)]
        nearly = o.get("wearly", 12)
        for i, (ph, it, t) in enumerate(order[len(order) - nearly:] if nearly else []):
            add((it, ph, t), (lambda i=i: self.issue_w(i)))
        for it in range(nit):
            self.iteration(N, it, extras)
            if it == 0: self.ts(5)
            if it == 3: self.ts(6)
        self.ts(7); self.diag(2)
        self.combine_and_project()
        self.ts(8); self.diag(3)
        return nearly

    def flag_issue(self):
        A = self.A
        A(f"v_and_b32 v{V_FLAG}, 15, v{V_LANE}"); A(f"v_lshlrev_b32 v{V_FLAG}, 2, v{V_FLAG}")
        self.vm(f"buffer_load_dword v{V_FLAG}, v{V_FLAG}, s[{R_DBG}:{R_DBG+3}], 0 offen offset:{DBG_FLAG} sc1", "flag")

    def flag_check(self, name):
        A = self.A
        if "flag" in self.q: self.wait("flag")
        ok = self.newlab("flagok"); lp = self.newlab("flaglp")
        A(f"v_cmp_gt_u32 vcc, 16, v{V_FLAG}")
        A(f"s_mov_b32 s{S_CNT}, 20000")
        self.nop(1)
        A(f"s_cbranch_vccz {ok}")
        self.lab(lp)
        A(f"v_and_b32 v{V_FLAG}, 15, v{V_LANE}"); A(f"v_lshlrev_b32 v{V_FLAG}, 2, v{V_FLAG}")
        A(f"buffer_load_dword v{V_FLAG}, v{V_FLAG}, s[{R_DBG}:{R_DBG+3}], 0 offen offset:{DBG_FLAG} sc1")
        A("s_waitcnt vmcnt(0)")
        A(f"v_cmp_gt_u32 vcc, 16, v{V_FLAG}")
        A(f"s_sub_u32 s{S_CNT}, s{S_CNT}, 1")
        A(f"s_cbranch_scc1 {ok}")
        self.nop(1)
        A(f"s_cbranch_vccnz {lp}")
        self.lab(ok)

    def any_sentinel(self, regs, tmp):
        A = self.A
        regs = list(regs)
        if len(regs) == 1:
            A(f"v_cmp_eq_u32 vcc, -1, v{regs[0]}"); return
        if len(regs) == 2:
            A(f"v_max_u32 v{tmp}, v{regs[0]}, v{regs[1]}"); rest = []
        else:
            A(f"v_max3_u32 v{tmp}, v{regs[0]}, v{regs[1]}, v{regs[2]}"); rest = regs[3:]
        while rest:
            if len(rest) >= 2:
                A(f"v_max3_u32 v{tmp}, v{tmp}, v{rest[0]}, v{rest[1]}"); rest = rest[2:]
            else:
                A(f"v_max_u32 v{tmp}, v{tmp}, v{rest[0]}"); rest = rest[1:]
        A(f"v_cmp_eq_u32 vcc, -1, v{tmp}")

    def poll_loop(self, name, loads, regs, tmp, bound=20000, sleep=0, masked=False, exec0=-1):
        A = self.A
        lp = self.newlab("poll_" + name); ex = self.newlab("pollx_" + name)
        A(f"s_mov_b32 s{S_CNT}, {bound}")
        self.lab(lp)
        loads()
        A("s_waitcnt vmcnt(0)")
        self.any_sentinel(regs, tmp)
        A(f"s_sub_u32 s{S_CNT}, s{S_CNT}, 1")
        A(f"s_cbranch_scc1 {ex}")
        self.nop(1)
        A(f"s_cbranch_vccz {ex}")
        if masked: A("s_and_b64 exec, exec, vcc")
        if sleep: A(f"s_sleep {sleep}")
        A(f"s_branch {lp}")
        self.lab(ex)
        if masked: self.sexec(exec0)
        self.q = []

    def build(self):
        A = self.A; o = self.o
        mp = o.get("map", 1)
        NF = o.get("nf", 33); NS = 64 - NF
        if mp == 0: NF = NS = 32
        self.L.append(HEADER.rstrip("\n"))
        self.L.append(f"; @launch grid=(256,1,1) block=(256,1,1) lds={LDS_TOTAL}")
        self.L.append('.amdgcn_target "amdgcn-amd-amdhsa--gfx950"')
        self.L.append(".text"); self.L.append(f".globl {KNAME}"); self.L.append(".p2align 8")
        self.L.append(f".type {KNAME},@function"); self.lab(KNAME)
        A("s_cmp_ge_u32 s2, 256"); A("s_cbranch_scc1 L_end")
        A("s_load_dwordx16 s[16:31], s[0:1], 0")
        A("s_load_dwordx8 s[32:39], s[0:1], 64")
        A("s_load_dwordx2 s[40:41], s[0:1], 96")
        if self.prof or o.get("diag"):
            A("s_memrealtime s[12:13]")
        A(f"v_lshrrev_b32 v{V_T0}, 6, v0")
        A(f"v_and_b32 v{V_LANE}, 63, v0")
        A(f"v_readfirstlane_b32 s{S_W}, v{V_T0}")
        A(f"v_lshlrev_b32 v{V_L16}, 4, v{V_LANE}")
        A(f"s_and_b32 s{S_XCD}, s2, 7"); A(f"s_lshr_b32 s{S_SLOT}, s2, 3")
        if mp == 0:
            A(f"s_and_b32 s{S_SPLIT}, s{S_SLOT}, 3")
            A(f"s_lshr_b32 s10, s{S_SLOT}, 2")
            A(f"s_and_b32 s{S_B}, s10, 1")
            A(f"s_lshr_b32 s10, s10, 1")
            A(f"s_lshl_b32 s{S_H}, s{S_XCD}, 2"); A(f"s_add_u32 s{S_H}, s{S_H}, s10")
            A(f"s_and_b32 s{S_R0}, s{S_SLOT}, 7"); A(f"s_lshl_b32 s{S_R0}, s{S_R0}, 2")
            A(f"s_mov_b32 s{S_VAR}, 0")
        else:
            A(f"s_and_b32 s{S_VAR}, s{S_XCD}, 1")
            if o.get("flip"): A(f"s_xor_b32 s{S_VAR}, s{S_VAR}, 1")
            A(f"s_lshl_b32 s{S_SPLIT}, s{S_VAR}, 1"); A(f"s_and_b32 s10, s{S_SLOT}, 1"); A(f"s_or_b32 s{S_SPLIT}, s{S_SPLIT}, s10")
            A(f"s_lshr_b32 s10, s{S_SLOT}, 1")
            A(f"s_and_b32 s{S_B}, s10, 1")
            A(f"s_lshr_b32 s10, s10, 1")
            A(f"s_lshr_b32 s{S_H}, s{S_XCD}, 1"); A(f"s_lshl_b32 s{S_H}, s{S_H}, 3"); A(f"s_add_u32 s{S_H}, s{S_H}, s10")
            A(f"s_and_b32 s{S_R0}, s{S_SLOT}, 3"); A(f"s_lshl_b32 s{S_R0}, s{S_R0}, 3")
        A(f"s_lshl_b32 s{S_P}, s{S_H}, 2"); A(f"s_add_u32 s{S_P}, s{S_P}, s{S_SPLIT}")
        A(f"s_mov_b32 s{S_ROLE}, 0"); A(f"s_mov_b32 s{S_RIDX}, 0")
        A("s_cmp_lt_u32 s2, 28"); A(f"s_cselect_b32 s{S_ROLE}, 2, s{S_ROLE}"); A(f"s_cselect_b32 s{S_RIDX}, s2, s{S_RIDX}")
        A("s_sub_u32 s11, s2, 64")
        A("s_cmp_lt_u32 s11, 64"); A(f"s_cselect_b32 s{S_ROLE}, 1, s{S_ROLE}"); A(f"s_cselect_b32 s{S_RIDX}, s11, s{S_RIDX}")
        g = V_T; c = V_T + 1
        A(f"v_lshrrev_b32 v{g}, 4, v{V_LANE}"); A(f"v_and_b32 v{c}, 15, v{V_LANE}")
        A(f"v_lshlrev_b32 v{V_T0}, 13, v{g}"); A(f"v_lshl_or_b32 v{V_T0}, v{c}, 4, v{V_T0}")
        for i in range(4): A(f"v_mov_b32 v{V_CL+i}, -1")
        A(f"s_lshl_b32 s10, s{S_W}, 8"); A("s_add_u32 s10, s10, s2"); A("s_lshl_b32 s10, s10, 10")
        A(f"v_add_u32 v{V_CL+4}, s10, v{V_L16}")
        A(f"s_lshl_b32 s{R_X}, s{S_B}, 10")
        A(f"s_lshl_b32 s{R_WQ}, s{S_H}, 8"); A(f"s_lshl_b32 s11, s{S_W}, 20"); A(f"s_add_u32 s{R_WQ}, s{R_WQ}, s11")
        A(f"s_lshl_b32 s{R_K}, s{S_B}, 5"); A(f"s_add_u32 s{R_K}, s{R_K}, s{S_H}"); A(f"s_lshl_b32 s{R_K}, s{R_K}, 21")
        A(f"s_lshl_b32 s11, s{S_SPLIT}, 14"); A(f"s_add_u32 s{R_K}, s{R_K}, s11")
        A(f"s_lshl_b32 s11, s{S_W}, 12"); A(f"s_add_u32 s{R_K}, s{R_K}, s11")
        A(f"s_mov_b32 s{R_V}, s{R_K}")
        A(f"s_sub_u32 s{R_K+2}, 0x8000000, s{R_K}"); A(f"s_mov_b32 s{R_V+2}, s{R_K+2}")
        A(f"s_sub_u32 s{R_WQ+2}, 0x400000, s{R_WQ}")
        for r in (R_X, R_WQ, R_K, R_V, R_OUT): A(f"s_mov_b32 s{r+3}, 0x00020000")
        A(f"s_mov_b32 s{R_X+2}, 1024"); A(f"s_mov_b32 s{R_OUT+2}, {WS_CLR_END}")
        A(f"s_lshl_b32 s{S_WOFF}, s{S_R0}, 15")
        A(f"s_mov_b32 s{S_M1}, 0xaaaaaaaa"); A(f"s_mov_b32 s{S_M1+1}, 0xaaaaaaaa")
        A(f"s_mov_b32 s{S_M2}, 0xcccccccc"); A(f"s_mov_b32 s{S_M2+1}, 0xcccccccc")
        t = V_T + 2
        A(f"v_and_b32 v{t}, 1, v{c}"); A(f"v_lshlrev_b32 v{t}, 4, v{t}")
        A(f"v_mov_b32 v{t+1}, 0xffff"); A(f"v_lshlrev_b32 v{t}, v{t}, v{t+1}")
        A(f"v_lshrrev_b32 v{t+1}, 1, v{c}")
        A(f"v_and_b32 v{t+2}, 3, v{t+1}")
        for r in range(4):
            A(f"v_cmp_eq_u32 vcc, {r}, v{t+1}"); self.nop(2)
            A(f"v_cndmask_b32 v{V_MASK+r}, 0, v{t}, vcc")
            A(f"v_cmp_eq_u32 vcc, {r}, v{t+2}"); self.nop(2)
            A(f"v_cndmask_b32 v{V_MASK2+r}, 0, v{t}, vcc")
        A("s_waitcnt lgkmcnt(0)")
        if self.prof: A(f"v_mov_b32 v{V_TS}, s12")
        if o.get("diag"): A(f"v_not_b32 v{V_DS}, s12")
        def fix(r, p):
            A(f"s_add_u32 s{r}, s{p}, s{r}"); A(f"s_addc_u32 s{r+1}, s{p+1}, 0")
        fix(R_X, P_X)
        self.vm(f"buffer_load_dwordx4 v[{V_X}:{V_X+3}], v{V_L16}, s[{R_X}:{R_X+3}], 0 offen", "x")
        fix(R_K, P_K); fix(R_V, P_V); fix(R_WQ, P_WQ)
        A(f"s_mov_b32 s{R_OUT}, s{P_WS}"); A(f"s_mov_b32 s{R_OUT+1}, s{P_WS+1}")
        pend = [("k", t) for t in range(16)] + [("v", t) for t in range(16)]
        def pstream(n=1):
            for _ in range(n):
                if pend:
                    kind, t = pend.pop(0); self.issue_kv(kind, 32, 0, t)
        wqi = [0]
        def pwq():
            i = wqi[0]; wqi[0] += 1
            self.vm(f"buffer_load_dwordx4 a[{A_W+4*i}:{A_W+4*i+3}], v{V_T0}, s[{R_WQ}:{R_WQ+3}], s{S_WOFF} offen{o.get('wqflag','')}", ("wq", i))
            if i < 31:
                A(f"s_add_u32 s{S_WOFF}, s{S_WOFF}, 0x8000"); A(f"s_and_b32 s{S_WOFF}, s{S_WOFF}, 0xfffff")
        npre = o.get("npre", 0)
        clr_pos = o.get("clrpos", 0)
        def clr():
            self.vm(f"buffer_store_dwordx4 v[{V_CL}:{V_CL+3}], v{V_CL+4}, s[{R_OUT}:{R_OUT+3}], 0 offen sc1", "clr")
        if clr_pos == 0: clr()
        pstream(npre)
        nfirst = o.get("nfirst", 10 - npre)
        for i in range(max(0, nfirst)): pwq()
        if clr_pos == 1: clr()
        A(f"s_lshl_b32 s10, s{S_H}, 17"); A(f"s_lshl_b32 s11, s{S_W}, 8"); A("s_add_u32 s10, s10, s11")
        A("s_sub_u32 s11, 0x400000, s10")
        self.srd(R_WO, P_WO, "s10", "s11")
        self.srd(R_WS, P_WS, None, WS_SIZE)
        self.srd(R_DBG, P_DBG, None, 256)
        A(f"s_lshl_b32 s10, s{S_RIDX}, 7"); A(f"s_mul_i32 s11, s{S_W}, {16*28672}"); A("s_add_u32 s10, s10, s11")
        A(f"s_sub_u32 s11, {512*3584}, s10")
        A(f"s_cmp_eq_u32 s{S_ROLE}, 2"); A("s_cselect_b32 s10, s10, 0"); A("s_cselect_b32 s11, s11, 0")
        self.srd(R_W1, P_W1, "s10", "s11")
        A(f"s_lshl_b32 s10, s{S_RIDX}, 16"); A(f"s_lshl_b32 s11, s{S_W}, 8"); A("s_add_u32 s10, s10, s11")
        A(f"s_sub_u32 s11, {1792*1024}, s10")
        A(f"s_cmp_eq_u32 s{S_ROLE}, 2"); A("s_cselect_b32 s10, s10, 0"); A("s_cselect_b32 s11, s11, 0")
        self.srd(R_W2, P_W2, "s10", "s11")
        A(f"s_cmp_eq_u32 s{S_ROLE}, 2")
        A(f"s_cselect_b32 s{R_BIAS}, s{P_B1}, s{P_B2}"); A(f"s_cselect_b32 s{R_BIAS+1}, s{P_B1+1}, s{P_B2+1}")
        A("s_mov_b32 s14, 3584"); A(f"s_cselect_b32 s{R_BIAS+2}, s14, 1024"); A(f"s_mov_b32 s{R_BIAS+3}, 0x00020000")
        A(f"v_lshrrev_b32 v{t}, 3, v{V_LANE}"); A(f"v_mul_u32_u24 v{V_W1E}, 3584, v{t}")
        A(f"v_bfe_u32 v{t}, v{V_LANE}, 4, 1"); A(f"v_lshlrev_b32 v{t}, 1, v{t}")
        A(f"v_and_b32 v{t+1}, 7, v{V_LANE}"); A(f"v_xor_b32 v{t}, v{t}, v{t+1}")
        A(f"v_xor_b32 v{t+1}, 4, v{t}")
        A(f"v_lshl_add_u32 v{V_W1O}, v{t+1}, 4, v{V_W1E}")
        A(f"v_lshl_add_u32 v{V_W1E}, v{t}, 4, v{V_W1E}")
        A(f"v_lshlrev_b32 v{V_W2O}, 14, v{g}"); A(f"v_lshl_or_b32 v{V_W2O}, v{c}, 4, v{V_W2O}")
        YA = V_T + 8
        A(f"s_lshl_b32 s10, s{S_W}, 11"); A(f"s_add_u32 s10, s10, {L_Y}")
        A(f"v_add_u32 v{V_T+7}, s10, v{V_L16}")
        A(f"s_lshl_b32 s11, s{S_W}, 8"); A("s_add_u32 s10, s10, s11")
        for u in range(2):
            A(f"v_add_u32 v{YA+u}, s{S_R0}, v{c}")
            if u: A(f"v_add_u32 v{YA+u}, 16, v{YA+u}")
            A(f"v_and_b32 v{YA+u}, 31, v{YA+u}")
            A(f"v_lshlrev_b32 v{YA+u}, 3, v{YA+u}"); A(f"v_lshl_or_b32 v{YA+u}, v{g}, 1, v{YA+u}")
            A(f"v_add_u32 v{YA+u}, s10, v{YA+u}")
        self.wait("x")
        self.ts(1)
        ln = self.capture(lambda: self.layernorm(V_X, 4, V_S, False, V_X))
        rem = 32 - wqi[0]
        step = max(1, len(ln) // max(1, rem))
        k = 0
        for i, line in enumerate(ln):
            self.L.append(line)
            if (i + 1) % step == 0 and wqi[0] < 32: pwq()
        while wqi[0] < 32: pwq()
        A(f"ds_write_b128 v{V_T+7}, v[{V_X}:{V_X+3}]")
        A("s_waitcnt lgkmcnt(0)")
        Y2 = V_T + 6
        A(f"ds_read_u16 v{Y2}, v{YA}"); A(f"ds_read_u16 v{Y2+1}, v{YA+1}")
        A("s_waitcnt lgkmcnt(0)")
        A(f"v_lshl_or_b32 v{Y2}, v{Y2}, 16, v{Y2}"); A(f"v_lshl_or_b32 v{Y2+1}, v{Y2+1}, 16, v{Y2+1}")
        self.nop(2)
        self.ts(2)
        nq = o.get("nqk", 12)
        self.abuild(V_A0, Y2, 0)
        for t in range(32):
            a = V_A0 if (t & 1) == 0 else V_A1
            an = V_A1 if (t & 1) == 0 else V_A0
            if t < 31: self.abuild(an, Y2 + ((t + 1) >> 4), (t + 1) & 15)
            else: self.nop(2)
            self.wait(("wq", t))
            cc = "0" if t == 0 else f"v[{V_D}:{V_D+3}]"
            A(f"v_mfma_f32_16x16x32_bf16 v[{V_D}:{V_D+3}], v[{a}:{a+3}], a[{A_W+4*t}:{A_W+4*t+3}], {cc}")
            if t >= 32 - nq: pstream()
        self.ts(3)
        A(f"v_lshrrev_b32 v{V_T}, 4, v{V_LANE}"); A(f"v_and_b32 v{V_T+1}, 15, v{V_LANE}")
        A(f"v_lshlrev_b32 v{V_T+2}, 5, v{V_T+1}"); A(f"v_lshl_or_b32 v{V_T+2}, v{V_T}, 4, v{V_T+2}")
        A(f"s_lshl_b32 s10, s{S_W}, 9"); A(f"s_add_u32 s10, s10, {L_Q}")
        A(f"v_add_u32 v{V_T+2}, s10, v{V_T+2}")
        A(f"v_lshlrev_b32 v{V_T0}, 10, v{V_T}"); A(f"v_lshl_or_b32 v{V_T0}, v{V_T+1}, 4, v{V_T0}")
        A(f"s_mov_b32 s{S_WOFF}, 0")
        self.nop(4)
        self.sexec(0xffffffff)
        A(f"ds_write_b128 v{V_T+2}, v[{V_D}:{V_D+3}]")
        self.sexec(-1)
        A(f"v_lshlrev_b32 v{V_T+1}, 5, v{V_T+1}")
        A(f"v_add_u32 v{V_T+1}, {L_Q}, v{V_T+1}")
        A("s_waitcnt lgkmcnt(0)"); A("s_barrier")
        F = V_S
        for w in range(4):
            d = F if w == 0 else F + 8
            A(f"ds_read_b128 v[{d}:{d+3}], v{V_T+1} offset:{w*512}")
            A(f"ds_read_b128 v[{d+4}:{d+7}], v{V_T+1} offset:{w*512+16}")
            if w > 0:
                A("s_waitcnt lgkmcnt(0)")
                for i in range(8): A(f"v_add_f32 v{F+i}, v{F+i}, v{F+8+i}")
        for i in range(4): A(f"v_cvt_pk_bf16_f32 v{V_Q+i}, v{F+2*i}, v{F+2*i+1}")
        assert "clr" not in self.q
        nf = self.newlab("noflag")
        A(f"s_cmp_lg_u32 s{S_W}, 0"); A(f"s_cbranch_scc1 {nf}")
        A(f"s_and_b32 s10, s2, 15"); A(f"s_lshl_b32 s10, s10, 2")
        A(f"v_mov_b32 v{V_T+8}, 1"); A(f"v_mov_b32 v{V_T+9}, s10")
        self.sexec(1)
        A(f"buffer_atomic_add v{V_T+8}, v{V_T+9}, s[{R_DBG}:{R_DBG+3}], 0 offen offset:{DBG_FLAG}")
        self.sexec(-1)
        self.lab(nf)
        A(f"v_mov_b32 v{V_M}, 0xff7fffff"); A(f"v_mov_b32 v{V_L}, 0")
        for r in range(4): A(f"v_mov_b32 v{V_D+r}, 0")
        self.srd(R_OUT, P_OUT, None, 2048)
        self.ts(4); self.diag(1)
        pstream(32)
        q0 = list(self.q); d0 = set(self.done)
        if NF != NS:
            A(f"s_cmp_lg_u32 s{S_VAR}, 0"); A("s_cbranch_scc1 L_slow")
        nearly = self.stream(NF, "a")
        qa = list(self.q)
        if NF != NS:
            A("s_branch L_roles")
            self.lab("L_slow")
            self.q = list(q0); self.done = set(d0)
            self.stream(NS, "b")
            assert [x for x in self.q] == qa, (self.q, qa)
        self.lab("L_roles")
        A(f"s_cmp_eq_u32 s{S_ROLE}, 1"); A("s_cbranch_scc1 L_red")
        A(f"s_cmp_eq_u32 s{S_ROLE}, 2"); A("s_cbranch_scc0 L_fin")
        self.role_mlp(nearly)
        A("s_branch L_fin")
        self.role_red()
        self.lab("L_fin")
        if self.prof:
            self.ts(13)
            A("s_lshl_b32 s10, s2, 2"); A(f"s_add_u32 s10, s10, s{S_W}"); A("s_lshl_b32 s10, s10, 6"); A(f"s_add_u32 s10, s10, {WS_TS}")
            A("s_getreg_b32 s11, hwreg(HW_REG_XCC_ID)"); A(f"v_mov_b32 v{V_TS+15}, s11")
            A(f"v_mov_b32 v{V_T}, s10")
            self.sexec(1)
            for i in range(4):
                A(f"buffer_store_dwordx4 v[{V_TS+4*i}:{V_TS+4*i+3}], v{V_T}, s[{R_WS}:{R_WS+3}], 0 offen offset:{16*i}")
            self.sexec(-1)
        if o.get("diag"):
            self.diag(7)
            A(f"v_mov_b32 v{V_T}, 0")
            self.sexec(1)
            for i in range(8):
                A(f"buffer_atomic_umax v{V_DS+i}, v{V_T}, s[{R_DBG}:{R_DBG+3}], 0 offen offset:{4*i}")
        A("s_waitcnt vmcnt(0)")
        self.lab("L_end"); A("s_endpgm")
        self.L += ['.section .rodata,"a"', ".p2align 6", f".amdhsa_kernel {KNAME}",
                   "  .amdhsa_next_free_vgpr 512", "  .amdhsa_next_free_sgpr 102", "  .amdhsa_accum_offset 256",
                   "  .amdhsa_group_segment_fixed_size 0", "  .amdhsa_kernarg_size 104", "  .amdhsa_user_sgpr_count 2",
                   "  .amdhsa_user_sgpr_kernarg_segment_ptr 1", "  .amdhsa_system_sgpr_workgroup_id_x 1", ".end_amdhsa_kernel"]
        return "\n".join(self.L) + "\n"

    def p_offset(self, v):
        A = self.A
        A(f"v_and_b32 v{v}, 15, v{V_LANE}"); A(f"v_lshlrev_b32 v{v}, 12, v{v}")
        A(f"v_lshrrev_b32 v{v+1}, 4, v{V_LANE}"); A(f"v_lshl_or_b32 v{v}, v{v+1}, 11, v{v}")
        A(f"s_lshl_b32 s10, s{S_B}, 2"); A(f"s_add_u32 s10, s10, s{S_W}"); A("s_lshl_b32 s10, s10, 16")
        A(f"s_lshl_b32 s11, s{S_P}, 4"); A("s_add_u32 s10, s10, s11")
        A(f"v_add_u32 v{v}, s10, v{v}")

    def combine_and_project(self):
        A = self.A
        T = V_T
        A(f"v_lshrrev_b32 v{T}, 4, v{V_LANE}"); A(f"v_and_b32 v{T+1}, 15, v{V_LANE}")
        A(f"v_lshlrev_b32 v{T+2}, 5, v{T+1}"); A(f"v_lshl_or_b32 v{T+2}, v{T}, 4, v{T+2}")
        A(f"s_lshl_b32 s10, s{S_W}, 9"); A(f"s_add_u32 s10, s10, {L_O}")
        A(f"v_add_u32 v{T+2}, s10, v{T+2}")
        A(f"s_lshl_b32 s10, s{S_W}, 3"); A(f"s_add_u32 s10, s10, {L_ML}")
        A(f"v_mov_b32 v{T+3}, s10")
        self.nop(4)
        self.sexec(0xffffffff)
        A(f"ds_write_b128 v{T+2}, v[{V_D}:{V_D+3}]")
        self.sexec(1)
        A(f"ds_write_b64 v{T+3}, v[{V_M}:{V_M+1}]")
        self.sexec(-1)
        A(f"v_lshlrev_b32 v{T+2}, 4, v{T+1}"); A(f"v_lshl_or_b32 v{T+2}, v{T}, 2, v{T+2}")
        A(f"v_add_u32 v{T+2}, {L_O}, v{T+2}")
        A(f"v_mov_b32 v{T+3}, {L_ML}")
        A("s_waitcnt lgkmcnt(0)"); A("s_barrier")
        ML = V_S
        OV = V_S + 8
        A(f"ds_read_b128 v[{ML}:{ML+3}], v{T+3}"); A(f"ds_read_b128 v[{ML+4}:{ML+7}], v{T+3} offset:16")
        for w in range(4):
            for u in range(2):
                A(f"ds_read_b32 v{OV+2*w+u}, v{T+2} offset:{w*512+u*256}")
        self.p_offset(T + 8)
        A(f"s_lshl_b32 s10, s{S_B}, 7"); A(f"s_add_u32 s10, s10, s{S_P}"); A("s_lshl_b32 s10, s10, 3"); A(f"s_add_u32 s10, s10, {WS_ML}")
        A(f"v_mov_b32 v{T+10}, s10")
        A("s_waitcnt lgkmcnt(8)")
        M = T + 4
        A(f"v_max_f32 v{M}, v{ML}, v{ML+2}"); A(f"v_max3_f32 v{M}, v{M}, v{ML+4}, v{ML+6}")
        for w in range(4):
            A(f"v_sub_f32 v{ML+2*w}, v{ML+2*w}, v{M}")
        for w in range(4):
            A(f"v_mul_f32 v{ML+2*w}, 0x{LOG2E:x}, v{ML+2*w}")
        for w in range(4):
            A(f"v_exp_f32 v{ML+2*w}, v{ML+2*w}")
        Ls = T + 5
        A(f"v_mul_f32 v{Ls}, v{ML}, v{ML+1}")
        for w in range(1, 4): A(f"v_fma_f32 v{Ls}, v{ML+2*w}, v{ML+2*w+1}, v{Ls}")
        A(f"v_min_u32 v{M}, -2, v{M}"); A(f"v_min_u32 v{Ls}, -2, v{Ls}")
        nm = self.newlab("noml")
        A(f"s_cmp_lg_u32 s{S_W}, 0"); A(f"s_cbranch_scc1 {nm}")
        self.sexec(1)
        assert M % 2 == 0 and Ls == M + 1
        A(f"buffer_store_dwordx2 v[{M}:{M+1}], v{T+10}, s[{R_WS}:{R_WS+3}], 0 offen sc1")
        self.sexec(-1)
        self.lab(nm)
        A("s_waitcnt lgkmcnt(0)")
        O2 = T + 6
        for u in range(2):
            A(f"v_mul_f32 v{O2+u}, v{ML}, v{OV+u}")
        for w in range(1, 4):
            for u in range(2):
                A(f"v_fma_f32 v{O2+u}, v{ML+2*w}, v{OV+2*w+u}, v{O2+u}")
        for u in range(2):
            A(f"v_cvt_pk_bf16_f32 v{O2+u}, v{O2+u}, v{O2+u}")
        self.nop(2)
        assert not any(isinstance(x, tuple) and x[0] == "wo" for x in self.q)
        self.abuild(V_A0, O2, 0)
        for t in range(32):
            a = V_A0 if (t & 1) == 0 else V_A1
            an = V_A1 if (t & 1) == 0 else V_A0
            if t < 31: self.abuild(an, O2 + ((t + 1) >> 4), (t + 1) & 15)
            else: self.nop(2)
            cc = "0" if t == 0 else f"v[{V_D}:{V_D+3}]"
            A(f"v_mfma_f32_16x16x32_bf16 v[{V_D}:{V_D+3}], v[{a}:{a+3}], a[{A_W+4*t}:{A_W+4*t+3}], {cc}")
        self.nop(8)
        for r in range(4): A(f"v_min_u32 v{V_D+r}, -2, v{V_D+r}")
        self.sexec(0xffffffff)
        self.vm(f"buffer_store_dwordx4 v[{V_D}:{V_D+3}], v{T+8}, s[{R_WS}:{R_WS+3}], 0 offen sc1", "P")
        self.sexec(-1)

    def pack_rows(self, x, tmp):
        A = self.A
        A(f"v_mov_b32 v{tmp}, v{x}"); self.nop(2)
        A(f"v_permlane16_swap_b32 v{x}, v{tmp}"); self.nop(1)
        A(f"v_cvt_pk_bf16_f32 v{x}, v{x}, v{tmp}")

    def role_red(self):
        A = self.A; T = V_T; o = self.o
        self.lab("L_red")
        self.q = []
        A(f"s_lshl_b32 s12, s{S_RIDX}, 2"); A(f"s_add_u32 s12, s12, s{S_W}")
        self.srd(R_X, P_X, None, 2048)
        A(f"v_lshrrev_b32 v{T+2}, 4, v{V_LANE}"); A(f"v_lshlrev_b32 v{T+2}, 1, v{T+2}")
        A("s_lshl_b32 s10, s12, 3")
        A(f"v_add_u32 v{T+3}, s10, v{T+2}")
        A(f"buffer_load_ushort v{V_XS}, v{T+3}, s[{R_X}:{R_X+3}], 0 offen")
        A("s_and_b32 s10, s10, 1023")
        A(f"v_add_u32 v{T+3}, s10, v{T+2}")
        A(f"buffer_load_ushort v{V_BS}, v{T+3}, s[{R_BIAS}:{R_BIAS+3}], 0 offen")
        A("s_lshl_b32 s10, s12, 11")
        A(f"v_add_u32 v{T+2}, s10, v{V_L16}")
        A(f"s_lshr_b32 s11, s{S_RIDX}, 5"); A("s_lshl_b32 s11, s11, 10"); A(f"s_add_u32 s11, s11, {WS_ML}")
        A(f"v_lshlrev_b32 v{T+3}, 3, v{V_LANE}"); A(f"v_add_u32 v{T+3}, s11, v{T+3}")
        PA = V_S; PB = V_S + 4; MA = V_S + 8; MB = V_S + 10
        def loadml():
            A(f"buffer_load_dwordx2 v[{MA}:{MA+1}], v{T+3}, s[{R_WS}:{R_WS+3}], 0 offen sc1")
            A(f"buffer_load_dwordx2 v[{MB}:{MB+1}], v{T+3}, s[{R_WS}:{R_WS+3}], 0 offen offset:512 sc1")
        self.poll_loop("ml", loadml, range(MA, MA + 4), T + 4, sleep=o.get("mlsleep", 4), masked=True)
        self.ts(9)
        def loadp():
            A(f"buffer_load_dwordx4 v[{PA}:{PA+3}], v{T+2}, s[{R_WS}:{R_WS+3}], 0 offen sc1")
            A(f"buffer_load_dwordx4 v[{PB}:{PB+3}], v{T+2}, s[{R_WS}:{R_WS+3}], 0 offen offset:1024 sc1")
        loadp()
        W = [T + 6, T + 7]
        for k, Mr in enumerate((MA, MB)):
            mx = T + 4; e = W[k]; l = T + 5
            A(f"v_mov_b32 v{mx}, v{Mr}"); self.nop(2)
            A(f"v_max_f32_dpp v{mx}, v{mx}, v{mx} quad_perm:[1,0,3,2] row_mask:0xf bank_mask:0xf"); self.nop(2)
            A(f"v_max_f32_dpp v{mx}, v{mx}, v{mx} quad_perm:[2,3,0,1] row_mask:0xf bank_mask:0xf")
            A(f"v_sub_f32 v{e}, v{Mr}, v{mx}"); A(f"v_mul_f32 v{e}, 0x{LOG2E:x}, v{e}"); A(f"v_exp_f32 v{e}, v{e}"); self.nop(1)
            A(f"v_mul_f32 v{l}, v{e}, v{Mr+1}"); self.nop(2)
            A(f"v_add_f32_dpp v{l}, v{l}, v{l} quad_perm:[1,0,3,2] row_mask:0xf bank_mask:0xf"); self.nop(2)
            A(f"v_add_f32_dpp v{l}, v{l}, v{l} quad_perm:[2,3,0,1] row_mask:0xf bank_mask:0xf")
            A(f"v_rcp_f32 v{l}, v{l}"); self.nop(1)
            A(f"v_mul_f32 v{e}, v{e}, v{l}")
        lp = self.newlab("pl"); ex = self.newlab("px")
        A(f"s_mov_b32 s{S_CNT}, 20000")
        self.lab(lp)
        A("s_waitcnt vmcnt(0)")
        self.any_sentinel(range(PA, PA + 8), T + 4)
        A(f"s_sub_u32 s{S_CNT}, s{S_CNT}, 1")
        A(f"s_cbranch_scc1 {ex}")
        self.nop(1)
        A(f"s_cbranch_vccz {ex}")
        A("s_and_b64 exec, exec, vcc")
        loadp()
        A(f"s_branch {lp}")
        self.lab(ex)
        self.sexec(-1)
        self.ts(10)
        for r in range(4): A(f"v_mul_f32 v{PA+r}, v{PA+r}, v{W[0]}")
        for r in range(4): A(f"v_fma_f32 v{PA+r}, v{PB+r}, v{W[1]}, v{PA+r}")
        self.quad4_reduce(PA)
        self.rbf(PA, PA)
        A(f"v_lshlrev_b32 v{V_XS}, 16, v{V_XS}")
        A(f"v_add_f32 v{PA}, v{PA}, v{V_XS}")
        self.rbf(V_HK, PA)
        self.pack_rows(PA, T + 4)
        A(f"v_min_u32 v{PA}, -2, v{PA}")
        A("s_lshl_b32 s10, s12, 3"); A(f"s_add_u32 s11, s10, {WS_H}")
        A(f"v_lshrrev_b32 v{T+5}, 5, v{V_LANE}"); A(f"v_lshlrev_b32 v{T+5}, 2, v{T+5}")
        A(f"v_add_u32 v{T+4}, s11, v{T+5}")
        A(f"s_mov_b32 exec_lo, 1"); A(f"s_mov_b32 exec_hi, 1")
        A(f"buffer_store_dword v{PA}, v{T+4}, s[{R_WS}:{R_WS+3}], 0 offen sc1")
        self.sexec(-1)
        self.ts(11)
        A(f"v_add_u32 v{T+5}, s10, v{T+5}")
        A("s_lshl_b32 s10, s12, 9"); A(f"s_add_u32 s10, s10, {WS_P2}")
        A(f"v_add_u32 v{T+2}, s10, v{V_L16}")
        for r in range(4): A(f"v_mov_b32 v{PA+r}, 0")
        A(f"v_lshlrev_b32 v{V_BS}, 16, v{V_BS}")
        self.sexec(0x0fffffff)
        def loadp2():
            A(f"buffer_load_dwordx4 v[{PA}:{PA+3}], v{T+2}, s[{R_WS}:{R_WS+3}], 0 offen sc1")
        self.poll_loop("p2", loadp2, range(PA, PA + 4), T + 4, masked=True)
        self.ts(12)
        self.quad4_reduce(PA)
        self.rbf(PA, PA)
        A(f"v_add_f32 v{PA}, v{PA}, v{V_BS}")
        self.rbf(PA, PA)
        A(f"v_add_f32 v{PA}, v{PA}, v{V_HK}")
        self.pack_rows(PA, T + 4)
        A(f"s_mov_b32 exec_lo, 1"); A(f"s_mov_b32 exec_hi, 1")
        A(f"buffer_store_dword v{PA}, v{T+5}, s[{R_OUT}:{R_OUT+3}], 0 offen")
        self.sexec(-1)

    def gelu(self, x, t):
        A = self.A
        A(f"v_mul_f32 v{t}, v{x}, v{x}")
        A(f"v_mul_f32 v{t}, 0x3d372713, v{t}")
        A(f"v_fma_f32 v{t}, v{t}, v{x}, v{x}")
        A(f"v_mul_f32 v{t}, 0xc0135761, v{t}")
        A(f"v_exp_f32 v{t}, v{t}"); self.nop(1)
        A(f"v_add_f32 v{t}, 1.0, v{t}")
        A(f"v_rcp_f32 v{t}, v{t}"); self.nop(1)
        A(f"v_mul_f32 v{x}, v{x}, v{t}")

    def role_mlp(self, nearly):
        A = self.A; T = V_T; o = self.o
        A(f"s_lshl_b32 s10, s{S_RIDX}, 7"); A(f"s_lshl_b32 s11, s{S_W}, 5"); A("s_add_u32 s10, s10, s11")
        A(f"v_and_b32 v{T+2}, 15, v{V_LANE}"); A(f"v_lshlrev_b32 v{T+2}, 1, v{T+2}"); A(f"v_add_u32 v{T+2}, s10, v{T+2}")
        for i in range(nearly, 16): self.issue_w(i)
        self.vm(f"buffer_load_ushort v{V_BS}, v{T+2}, s[{R_BIAS}:{R_BIAS+3}], 0 offen", "b1")
        for i in range(max(nearly, 16), 32): self.issue_w(i)
        A(f"v_and_b32 v{T+3}, 15, v{V_LANE}"); A(f"v_cmp_eq_u32 vcc, 2, v{T+3}")
        A(f"v_mov_b32 v{T+4}, 0x3f803f80"); self.nop(1)
        A(f"v_cndmask_b32 v{T+4}, 0, v{T+4}, vcc")
        for i in range(64): A(f"v_mov_b32 v{V_Z+i}, v{T+4}")
        A(f"v_lshrrev_b32 v{T}, 4, v{V_LANE}"); A(f"v_bfe_u32 v{T+1}, v{V_LANE}, 2, 2")
        A(f"v_lshlrev_b32 v{T+5}, 10, v{T}"); A(f"v_lshl_or_b32 v{T+5}, v{T+1}, 7, v{T+5}")
        A(f"v_lshrrev_b32 v{T+1}, 1, v{T+1}"); A(f"v_and_b32 v{T}, 1, v{T}"); A(f"v_lshl_or_b32 v{T+1}, v{T}, 1, v{T+1}")
        A(f"v_xor_b32 v{T+1}, s{S_W}, v{T+1}"); A(f"v_lshl_or_b32 v{T+5}, v{T+1}, 5, v{T+5}")
        A(f"v_and_b32 v{T+1}, 3, v{V_LANE}"); A(f"v_lshl_or_b32 v{T+5}, v{T+1}, 3, v{T+5}")
        if L_W1: A(f"v_add_u32 v{T+5}, {L_W1}, v{T+5}")
        self.wait(("w", 15))
        A("s_barrier")
        for t in range(16):
            d = V_KB + 4 * t
            A(f"ds_read_b64_tr_b16 v[{d}:{d+1}], v{T+5} offset:{t*4096}")
            A(f"ds_read_b64_tr_b16 v[{d+2}:{d+3}], v{T+5} offset:{t*4096+512}")
            if t % 4 == 3: A("s_waitcnt lgkmcnt(0)")
        A(f"v_lshlrev_b32 v{T+2}, 5, v{V_LANE}"); A(f"v_add_u32 v{T+2}, {WS_H}, v{T+2}")
        A(f"s_lshl_b32 s10, s{S_W}, 11"); A(f"s_add_u32 s10, s10, {L_Y}")
        A(f"v_lshlrev_b32 v{T+8}, 5, v{V_LANE}"); A(f"v_add_u32 v{T+8}, s10, v{T+8}")
        A(f"v_and_b32 v{T+9}, 15, v{V_LANE}"); A(f"v_lshlrev_b32 v{T+9}, 10, v{T+9}")
        A(f"v_lshrrev_b32 v{T+4}, 4, v{V_LANE}"); A(f"v_lshl_or_b32 v{T+9}, v{T+4}, 4, v{T+9}")
        A(f"v_add_u32 v{T+9}, s10, v{T+9}")
        A(f"v_and_b32 v{T+10}, 15, v{V_LANE}"); A(f"v_lshlrev_b32 v{T+10}, 2, v{T+10}")
        A(f"s_lshl_b32 s11, s{S_W}, 6"); A(f"s_add_u32 s11, s11, {L_G}"); A(f"v_add_u32 v{T+10}, s11, v{T+10}")
        A(f"v_bfe_u32 v{T+11}, v{V_LANE}, 3, 1"); A(f"v_lshlrev_b32 v{T+11}, 8, v{T+11}")
        A(f"v_lshl_or_b32 v{T+11}, v{T+4}, 6, v{T+11}"); A(f"v_add_u32 v{T+11}, {L_G}, v{T+11}")
        A(f"v_and_b32 v{T+12}, 15, v{V_LANE}"); A(f"v_lshlrev_b32 v{T+12}, 10, v{T+12}")
        A(f"v_and_b32 v{T+13}, 1, v{T+4}"); A(f"v_lshl_or_b32 v{T+12}, v{T+13}, 9, v{T+12}")
        A(f"v_lshrrev_b32 v{T+13}, 1, v{T+4}"); A(f"v_lshl_or_b32 v{T+12}, v{T+13}, 16, v{T+12}")
        A(f"s_lshl_b32 s10, s{S_W}, 14"); A(f"s_lshl_b32 s11, s{S_RIDX}, 4"); A("s_add_u32 s10, s10, s11"); A(f"s_add_u32 s10, s10, {WS_P2}")
        A(f"v_add_u32 v{T+12}, s10, v{T+12}")
        self.wait(("w", 31))
        A(f"v_lshlrev_b32 v{V_BS}, 16, v{V_BS}")
        self.ts(9)
        HR = V_A0
        def loads():
            A(f"buffer_load_dwordx4 v[{HR}:{HR+3}], v{T+2}, s[{R_WS}:{R_WS+3}], 0 offen sc1")
            A(f"buffer_load_dwordx4 v[{HR+4}:{HR+7}], v{T+2}, s[{R_WS}:{R_WS+3}], 0 offen offset:16 sc1")
        self.poll_loop("h", loads, range(HR, HR + 8), T + 3, masked=True)
        self.ts(10)
        A(f"ds_write_b128 v{T+8}, v[{HR}:{HR+3}]"); A(f"ds_write_b128 v{T+8}, v[{HR+4}:{HR+7}] offset:16")
        self.ln_unpack(HR, 8, V_S)
        A("s_waitcnt lgkmcnt(0)")
        self.sexec(0x0003000300030003)
        for t in range(16):
            A(f"ds_read_b128 v[{V_Z+4*t}:{V_Z+4*t+3}], v{T+9} offset:{t*64}")
        self.sexec(-1)
        st = self.capture(lambda: self.ln_stats(8, V_S, True))
        mf = []
        for t in range(16):
            cc = "0" if t == 0 else f"v[{V_D}:{V_D+3}]"
            mf.append([f"  s_waitcnt lgkmcnt({15-t})",
                       f"  v_mfma_f32_16x16x32_bf16 v[{V_D}:{V_D+3}], v[{V_Z+4*t}:{V_Z+4*t+3}], v[{V_KB+4*t}:{V_KB+4*t+3}], {cc}"])
        lead = o.get("stlead", 20)
        step = max(1, (len(st) - lead) // 16)
        k = 0
        for i, line in enumerate(st):
            self.L.append(line)
            if i >= lead and (i - lead) % step == 0 and k < 16:
                self.L += mf[k]; k += 1
        while k < 16:
            self.L += mf[k]; k += 1
        self.nop(1)
        A(f"v_readlane_b32 s10, v{V_T}, 0"); A(f"v_readlane_b32 s11, v{V_T+1}, 0")
        A(f"v_readlane_b32 s12, v{V_T}, 32"); A(f"v_readlane_b32 s13, v{V_T+1}, 32")
        self.nop(8)
        for r in range(2):
            x = V_D + r
            A(f"v_fma_f32 v{x}, -s{10+2*r}, v{V_D+2}, v{x}")
            A(f"v_mul_f32 v{x}, s{11+2*r}, v{x}")
        for r in range(2):
            x = V_D + r
            self.rbf(x, x)
            A(f"v_add_f32 v{x}, v{x}, v{V_BS}")
            self.rbf(x, x)
        for r in range(2):
            self.gelu(V_D + r, T + 3 + r)
        for r in range(2):
            A(f"v_cvt_pk_bf16_f32 v{V_D+r}, v{V_D+r}, v{V_D+r}")
        self.sexec(0xffff)
        A(f"ds_write_b32 v{T+10}, v{V_D}"); A(f"ds_write_b32 v{T+10}, v{V_D+1} offset:256")
        self.sexec(-1)
        A("s_waitcnt lgkmcnt(0)"); A("s_barrier")
        for i in range(4):
            A(f"ds_read_b128 v[{V_G+4*i}:{V_G+4*i+3}], v{T+11} offset:{16*i}")
        def ab2(dst, t):
            for r in range(4): A(f"v_and_b32 v{dst+r}, v{V_G+t}, v{V_MASK2+r}")
        A("s_waitcnt lgkmcnt(3)")
        ab2(V_A0, 0)
        for t in range(16):
            a = V_A0 if (t & 1) == 0 else V_A1
            an = V_A1 if (t & 1) == 0 else V_A0
            if t < 15:
                if (t + 1) % 4 == 0: A(f"s_waitcnt lgkmcnt({3 - (t + 1) // 4})")
                ab2(an, t + 1)
            else: self.nop(2)
            cc = "0" if t == 0 else f"v[{V_D}:{V_D+3}]"
            A(f"v_mfma_f32_16x16x32_bf16 v[{V_D}:{V_D+3}], v[{a}:{a+3}], a[{A_W2+4*t}:{A_W2+4*t+3}], {cc}")
        self.nop(8)
        for r in range(4): A(f"v_min_u32 v{V_D+r}, -2, v{V_D+r}")
        A(f"buffer_store_dwordx4 v[{V_D}:{V_D+3}], v{T+12}, s[{R_WS}:{R_WS+3}], 0 offen sc1")
        self.ts(11)


def gen(prof=False, **opts):
    return Gen(prof=prof, opts=opts).build()


if __name__ == "__main__":
    out = sys.argv[1] if len(sys.argv) > 1 else "sequential_preLN__mha_block_cached__mixer_channel_mlp__decode.s"
    prof = "prof" in sys.argv[2:]
    opts = {}
    for a in sys.argv[2:]:
        if "=" in a:
            k, v = a.split("=", 1)
            try: v = int(v, 0)
            except ValueError: v = v.replace("_", " ")
            opts[k] = v
    open(out, "w").write(gen(prof=prof, **opts))
    print("wrote", out)
```
